```python
import torch

def _softmax(x, axis=-1):
    return torch.softmax(x, dim=axis)
def _gelu(x):
    return torch.nn.functional.gelu(x, approximate="tanh")
def _silu(x):
    return torch.nn.functional.silu(x)
def _sigmoid(x):
    return torch.sigmoid(x)
def _layernorm(x, axis=-1, eps=1e-5):
    m = x.mean(dim=axis, keepdim=True)
    v = x.var(dim=axis, keepdim=True, unbiased=False)
    return (x - m) / torch.sqrt(v + eps)
def _scatter_add(tgt, idx, src, axis=0):
    return tgt.clone().index_add_(axis, idx, src)
def _segment_sum(src, seg, n):
    out = torch.zeros((n,) + src.shape[1:], dtype=src.dtype)
    return out.index_add_(0, seg, src)
def _pad(x, pw):
    flat = tuple(v for pair in reversed(pw) for v in pair)
    return torch.nn.functional.pad(x, flat)

kernel_name = 'recurrent_scan__linear_kernel_hedgehog__glu_gated_reglu__prompt'

def setup_inputs():

    _w = (lambda a: (lambda t: t.to(torch.bfloat16) if t.is_floating_point() else t)(torch.as_tensor(a)))
    def _A_setup():
        B, S, D, H = 1, 2048, 512, 32
        Dh = D // H
        return {
            "x": _w((lambda *s: torch.randn(*s, dtype=torch.bfloat16) * 0.05)(B, S, D)),
            "wqkv": _w((lambda *s: torch.randn(*s, dtype=torch.bfloat16) * 0.8)(D, 3 * D)),
            "w_phi": _w((lambda *s: torch.randn(*s, dtype=torch.bfloat16) * 0.8)(H, Dh, Dh) * (Dh ** -0.5)),
            "wo": _w((lambda *s: torch.randn(*s, dtype=torch.bfloat16) * 0.8)(D, D)),
        }
    _A_in = _A_setup()

    def _B_setup():
        B, S, D, F = 1, 2048, 512, 1792
        return {
            "x": _w((lambda *s: torch.randn(*s, dtype=torch.bfloat16) * 0.05)(B, S, D)),
            "W_gate": _w((lambda *s: torch.randn(*s, dtype=torch.bfloat16) * 0.2)(D, F) * (2.0 / D) ** 0.5),
            "W_up": _w((lambda *s: torch.randn(*s, dtype=torch.bfloat16) * 0.2)(D, F) * (2.0 / D) ** 0.5),
            "W_down": _w((lambda *s: torch.randn(*s, dtype=torch.bfloat16) * 0.2)(F, D) * (1.0 / F) ** 0.5),
        }
    _B_in = _B_setup()

    return {
        "A_x": _A_in["x"],
        "A_wqkv": _A_in["wqkv"],
        "A_w_phi": _A_in["w_phi"],
        "A_wo": _A_in["wo"],
        "B_x": _B_in["x"],
        "B_W_gate": _B_in["W_gate"],
        "B_W_up": _B_in["W_up"],
        "B_W_down": _B_in["W_down"],
    }

def reference(A_x, A_wqkv, A_w_phi, A_wo, B_x, B_W_gate, B_W_up, B_W_down):
    def _A_ref(x, wqkv, w_phi, wo):
        B, S, D = x.shape
        H = 32; Dh = D // H
        qkv = (lambda x, *d: x.permute(*d))((x @ wqkv).reshape(B, S, 3, H, Dh), 2, 0, 3, 1, 4)
        q, k, v = qkv[0], qkv[1], qkv[2]
        pq = torch.einsum("bhsd,hdf->bhsf", q, w_phi)
        pk = torch.einsum("bhsd,hdf->bhsf", k, w_phi)
        phi_q = torch.concatenate([_softmax(pq, axis=-1), _softmax(-pq, axis=-1)], axis=-1)
        phi_k = torch.concatenate([_softmax(pk, axis=-1), _softmax(-pk, axis=-1)], axis=-1)
        kv = torch.einsum("bhsf,bhsd->bhfd", phi_k, v)
        z  = torch.einsum("bhsf->bhf", phi_k)
        num = torch.einsum("bhqf,bhfd->bhqd", phi_q, kv)
        den = torch.einsum("bhqf,bhf->bhq", phi_q, z)[..., None] + 1e-6
        o = num / den
        return (lambda x, *d: x.permute(*d))(o, 0, 2, 1, 3).reshape(B, S, D) @ wo

    def _B_ref(x, W_gate, W_up, W_down):
        gate = torch.einsum("bsd,df->bsf", x, W_gate)
        up = torch.einsum("bsd,df->bsf", x, W_up)
        gate = gate * (lambda x, dt: x.to(dt))(gate > 0, gate.dtype)
        h = gate * up
        return torch.einsum("bsf,fd->bsd", h, W_down)

    x = A_x
    xn = _layernorm(x, axis=-1)
    s = _A_ref(xn, A_wqkv, A_w_phi, A_wo)
    g = _silu(_B_ref(xn, B_W_gate, B_W_up, B_W_down))
    return x + s * g
```

```python
import re

def regs_of(tok):
    tok = tok.strip()
    neg = tok.lstrip("-")
    if neg.startswith("abs(") or neg.startswith("|"):
        neg = neg.replace("abs(", "").replace(")", "").replace("|", "")
    m = re.fullmatch(r"([vas])\[(\d+):(\d+)\]", neg)
    if m:
        return [f"{m.group(1)}{i}" for i in range(int(m.group(2)), int(m.group(3)) + 1)]
    m = re.fullmatch(r"([vas])(\d+)", neg)
    if m:
        return [neg]
    if neg in ("vcc", "exec"):
        return [neg + "_lo", neg + "_hi"]
    if neg in ("m0", "vcc_lo", "vcc_hi", "exec_lo", "exec_hi", "scc"):
        return [neg]
    return []

TRANS = ("v_exp_f32", "v_log_f32", "v_rcp_f32", "v_rsq_f32", "v_sqrt_f32")

class Ins:
    def __init__(self, text):
        self.text = text.strip()
        t = self.text.split(";")[0].strip()
        parts = t.split(None, 1)
        self.op = parts[0]
        ops = []
        if len(parts) > 1:
            raw = [o.strip() for o in parts[1].split(",")]
            if raw:
                last = raw[-1].split()
                raw[-1] = last[0] if last else ""
                self.mods = last[1:]
            ops = raw
        else:
            self.mods = []
        self.ops = ops
        op = self.op
        self.w = []; self.r = []; self.rc = []; self.rab = []
        self.kind = "other"
        R = lambda i: regs_of(ops[i]) if i < len(ops) else []
        if op.startswith("v_mfma"):
            self.kind = "mfma"
            self.passes = 8 if "32x32x16" in op else 4
            self.w = R(0); self.rab = R(1) + R(2); self.rc = R(3); self.r = self.rab + self.rc
        elif op.startswith("v_cmp"):
            self.kind = "valu"; self.w = R(0); self.r = R(1) + R(2)
        elif op.startswith("v_readfirstlane") or op.startswith("v_readlane"):
            self.kind = "valu"; self.w = R(0); self.r = R(1) + R(2)
        elif op.startswith("v_permlane"):
            self.kind = "valu"; self.w = R(0) + R(1); self.r = R(0) + R(1)
        elif op.startswith("v_"):
            self.kind = "valu"
            self.w = R(0)
            for i in range(1, len(ops)): self.r += R(i)
            if op.startswith("v_fmac") or op.startswith("v_dot2c"): self.r += R(0)
            if op.startswith("v_cndmask") and len(ops) == 3: self.r += ["vcc_lo", "vcc_hi"]
        elif op.startswith("ds_read"):
            self.kind = "dsr"; self.w = R(0); self.r = R(1)
        elif op.startswith("ds_write"):
            self.kind = "dsw"; self.r = R(0) + R(1) + R(2)
        elif op.startswith("buffer_load"):
            if "lds" in self.mods:
                self.kind = "dma"; self.r = R(0) + R(1) + R(2) + ["m0"]
            else:
                self.kind = "vml"; self.w = R(0); self.r = R(1) + R(2) + R(3)
        elif op.startswith("buffer_store") or op.startswith("buffer_atomic"):
            self.kind = "vms"; self.r = R(0) + R(1) + R(2) + R(3); self.data = R(0)
        elif op.startswith("global_load"):
            self.kind = "vml"; self.w = R(0); self.r = R(1) + R(2)
        elif op.startswith("s_nop"):
            self.kind = "nop"
        elif op.startswith("s_"):
            self.kind = "salu"
            if op.startswith(("s_cmp", "s_cbranch", "s_branch", "s_waitcnt", "s_barrier", "s_endpgm", "s_setprio", "s_sleep")):
                for i in range(len(ops)): self.r += R(i)
            else:
                self.w = R(0)
                for i in range(1, len(ops)): self.r += R(i)
        self.trans = op.replace("_e32", "").replace("_e64", "") in TRANS
        self.dot = op.startswith("v_dot")
        self.states = 1
        if self.kind == "nop":
            self.states = int(ops[0], 0) + 1

class Emitter:
    def __init__(self):
        self.out = []
        self.hist = []
        self.pos = 0
        self.vmq = []
        self.vm_done = set()
        self.lgq = []
        self.lg_done = set()
        self.n_nops = 0
        self.count = {}
    def raw(self, text):
        for l in text.split("\n"):
            self.out.append(l)
    def label(self, name):
        self.out.append(name + ":")
    def comment(self, s):
        self.out.append("    ; " + s)
    def need(self, ins):
        need = 0
        rs = set(ins.r); ws = set(ins.w)
        for (p, ppos) in reversed(self.hist):
            dist = self.pos - ppos - p.states
            if dist >= 20: break
            pw = set(p.w)
            req = 0
            if p.kind == "valu":
                vw = {x for x in pw if x[0] in "va" and not x.startswith("vcc")}
                sw = pw - vw
                if ins.kind == "mfma" and vw & rs: req = max(req, 2)
                if ins.op.startswith("v_permlane") and vw & rs: req = max(req, 2)
                if ins.op.startswith(("v_readfirstlane", "v_readlane")) and vw & rs: req = max(req, 1)
                if "dpp" in ins.op and vw & rs: req = max(req, 2)
                if p.trans and ins.kind == "valu" and not ins.trans and vw & rs: req = max(req, 1)
                if p.trans and ins.kind in ("vms", "dsw", "mfma") and vw & rs: req = max(req, 2)
                if p.dot and ins.kind in ("valu", "vms", "dsw", "mfma"):
                    if ins.op == p.op:
                        ab = set(regs_of(ins.ops[1]) + regs_of(ins.ops[2]))
                        if vw & ab: req = max(req, 3)
                    elif vw & (rs | ws): req = max(req, 3)
                if sw & rs:
                    if ins.kind == "valu": req = max(req, 2)
                    elif ins.kind in ("vml", "vms", "dma"): req = max(req, 5)
                    elif ins.kind == "salu": req = max(req, 1)
            elif p.kind == "mfma":
                big = 12 if p.passes == 8 else 8
                ovl = 10 if p.passes == 8 else 6
                if ins.kind == "mfma":
                    if pw & set(ins.rab): req = max(req, big)
                    if pw & set(ins.rc):
                        if not (p.w == ins.rc and p.passes == ins.passes): req = max(req, ovl)
                    elif pw & ws: req = max(req, big)
                elif ins.kind in ("valu", "vms", "dsw", "dsr", "vml", "dma"):
                    if pw & (rs | ws): req = max(req, big)
                    if ins.kind == "valu" and set(p.rc) & ws: req = max(req, 7 if p.passes == 8 else 3)
            elif p.kind in ("vms", "dsw"):
                data = set(getattr(p, "data", p.r))
                if ins.kind in ("valu", "dsr", "vml") and data & ws and len(data) >= 3: req = max(req, 2)
            elif p.kind == "salu":
                if "m0" in pw and ins.kind == "dma": req = max(req, 1)
            if req > dist: need = max(need, req - dist)
        return need
    def __call__(self, text, tag=None):
        for line in text.split("\n"):
            line = line.strip()
            if not line or line.startswith(";"):
                if line: self.out.append("    " + line)
                continue
            if line.endswith(":"):
                self.out.append(line); continue
            ins = Ins(line)
            n = self.need(ins)
            while n > 0:
                k = min(n, 16)
                nop = Ins(f"s_nop {k-1}")
                self._push(nop); self.n_nops += 1
                n -= k
            self._push(ins)
            if ins.kind in ("vml", "vms", "dma"):
                self.vmq.append(tag)
            elif ins.kind in ("dsr", "dsw"):
                self.lgq.append(tag)
    def _push(self, ins):
        self.out.append("    " + ins.text)
        self.hist.append((ins, self.pos))
        self.pos += ins.states
        if len(self.hist) > 40: self.hist.pop(0)
        self.count[ins.kind] = self.count.get(ins.kind, 0) + 1
    def _wait(self, q, done, tag, name, maxn):
        if tag in done and tag not in q: return
        idx = [i for i, t in enumerate(q) if t == tag]
        assert idx, f"wait on unknown tag {tag}"
        last = idx[-1]
        n = len(q) - 1 - last
        n = min(n, maxn)
        self(f"s_waitcnt {name}({n})")
        k = len(q) - n
        for t in q[:k]: done.add(t)
        del q[:k]
    def vm_wait(self, tag): self._wait(self.vmq, self.vm_done, tag, "vmcnt", 63)
    def lg_wait(self, tag): self._wait(self.lgq, self.lg_done, tag, "lgkmcnt", 15)
    def lg_all(self):
        if self.lgq:
            self("s_waitcnt lgkmcnt(0)")
            for t in self.lgq: self.lg_done.add(t)
            self.lgq.clear()
    def vm_all(self):
        self("s_waitcnt vmcnt(0)")
        for t in self.vmq: self.vm_done.add(t)
        self.vmq.clear()
    def fence(self):
        self("s_nop 15"); self("s_nop 3")
    def text(self):
        return "\n".join(self.out) + "\n"
```

```python
import sys, argparse
from emit import Emitter
NAME = "recurrent_scan__linear_kernel_hedgehog__glu_gated_reglu__prompt"

HB   = 0x0
KVP  = 0x900000
FL1  = 0xA40000
FLA  = 0xA42000
FLB  = 0xA44000
STAMP = 0x2000000
DUMP = 0x3000000
R4 = 131072
WPHI_L = R4
PHI_L = R4 + 4096
V_L = R4 + 20480
KVF_L = R4 + 28672
LOG2E = 0x3fb8aa3b

sW, sI, sJ, sROT = 3, 4, 5, 6
SX, SQKV, SF, SD, SO, SWS, SOUT, SDBG, SPHI = 32, 36, 40, 44, 48, 52, 56, 60, 64
sEP = 68
sT0, sT1, sT2, sT3 = 70, 71, 72, 73
sLW = 74
sFAo = 75
sFBo = 76
sHst = 77
sW2d = 78
sW2o = 79
sTA, sTB = 80, 81
sRB, sCB = 30, 31
sH2, sO2 = 82, 83
sCNT = 7
sST = 84
def srd(n): return f"s[{n}:{n+3}]"

ACCA, ACCB = 0, 64
vK, vV, vQ, vP = 128, 144, 160, 176
vPHQ = 192
vKB = 208
vWP = 216
vT = 224
vL16 = 230
vFA, vFB, vW2 = 231, 232, 233
vRqK, vRqL = 234, 235
vR4L, vR4H = 236, 240
vR2 = 244
vPhiW, vVW = 246, 247
vKvA, vKvB = 248, 249
vKVst, vKVld, vKVFw, vKVFr = 250, 251, 252, 253
vWPr, vSGN = 254, 255
aXN = 0
aFR = 128; NFR = 8
aKVF = 160
aKA, aKB = 176, 192
aONE = 208
aDKV, aDZ = 212, 216

def vr(b, n): return f"v[{b}:{b+n-1}]" if n > 1 else f"v{b}"
def ar(b, n): return f"a[{b}:{b+n-1}]" if n > 1 else f"a{b}"

class Gen:
    def __init__(self, stamps=False, dump=None, quota=(4, 3), touch=True):
        self.E = Emitter()
        self.stamps = stamps; self.dump = dump; self.nst = 0
        self.quota = quota; self.touch = touch
        self.lbl = 0
    def newlabel(self, p):
        self.lbl += 1
        return f"L_{p}_{self.lbl}"
    def stamp(self, k):
        if self.stamps:
            self.E.raw(f"    s_memtime s[{sST+2*k}:{sST+2*k+1}]")

    def poll_check(self, E, vdata, reload_text, tag):
        ok = self.newlabel("pok"); lp = self.newlabel("plp")
        E.vm_wait(tag)
        E(f"s_mov_b32 s{sCNT}, 0")
        E(f"v_cmp_eq_u64 vcc, s[{sEP}:{sEP+1}], {vr(vdata,2)}")
        E("s_cmp_eq_u64 vcc, exec")
        E(f"s_cbranch_scc1 {ok}")
        E.raw(f"""{lp}:
    {reload_text}
    s_waitcnt vmcnt(0)
    v_cmp_eq_u64 vcc, s[{sEP}:{sEP+1}], {vr(vdata,2)}
    s_add_u32 s{sCNT}, s{sCNT}, 1
    s_cmp_gt_u32 s{sCNT}, 0x40000
    s_cbranch_scc1 {ok}
    s_cmp_eq_u64 vcc, exec
    s_cbranch_scc0 {lp}
{ok}:""")

    def dma_batch_items(self, kind, arg, phys, tag):
        items = []
        for n in range(8):
            def f(E, n=n):
                if n % 4 == 0:
                    if isinstance(phys, tuple):
                        E(f"s_xor_b32 s{sT0}, s{sROT}, {phys[1]*32768}")
                        E(f"s_add_u32 s{sT0}, s{sT0}, {n*1024}")
                        E(f"s_add_u32 m0, s{sT0}, s{sLW}")
                    else:
                        E(f"s_add_u32 m0, s{sLW}, {phys + n*1024}")
                c = (n % 4) * 1024
                if kind == "qkv":
                    E(f"s_add_u32 s{sT1}, s{sT2}, {arg*1024 + n*16*3072 - c}")
                    E(f"buffer_load_dwordx4 v{vT+5}, {srd(SQKV)}, s{sT1} offen offset:{c} lds", tag)
                elif kind == "fa":
                    E(f"s_add_u32 s{sT1}, s{sFAo}, {(128*arg + 8*n)*3584 - c}")
                    E(f"buffer_load_dwordx4 v{vFA}, {srd(SF)}, s{sT1} offen offset:{c} lds", tag)
                elif kind == "fb8":
                    E(f"s_add_u32 s{sT1}, s{sFBo}, {(128*arg + 8*n)*3584 - c}")
                    E(f"buffer_load_dwordx4 v{vFB}, {srd(SF)}, s{sT1} offen offset:{c} lds", tag)
                elif kind == "fb6":
                    E(f"s_add_u32 s{sT1}, s{sFBo}, {(256*arg + 16*n)*3584 - c}")
                    E(f"buffer_load_dwordx4 v{vFB}, {srd(SF)}, s{sT1} offen offset:{c} lds", tag)
                elif kind == "w2":
                    typ, rel = STEPS[8*arg + n]
                    base = sW2d if typ == "h" else sW2o
                    E(f"s_add_u32 s{sT1}, s{base}, {rel*16*1024 + 4096 - c}")
                    E(f"buffer_load_dwordx4 v{vW2}, {srd(SD if typ == 'h' else SO)}, s{sT1} offen offset:{c} lds", tag)
            items.append((3 if n % 4 == 0 else 2, f))
        return items

    def prologue(self):
        E = self.E
        E.raw(f"""; @launch grid=(256,1,1) block=(256,1,1) lds=163840
.amdgcn_target "amdgcn-amd-amdhsa--gfx950"
.text
.globl {NAME}_kernel
.p2align 8
.type {NAME}_kernel,@function
{NAME}_kernel:""")
        E(f"""s_cmp_ge_u32 s2, 256
s_cbranch_scc1 L_end
s_load_dwordx16 s[8:23], s[0:1], 0
s_load_dwordx4 s[24:27], s[0:1], 64
s_load_dwordx2 s[28:29], s[0:1], 80
s_memrealtime s[{sEP}:{sEP+1}]""")
        self.stamp(0)
        vLN = vT
        E(f"""v_lshrrev_b32 v1, 6, v0
v_and_b32 v{vLN}, 63, v0
v_readfirstlane_b32 s{sW}, v1
s_getpc_b64 s[{sT0}:{sT0+1}]""")
        E.raw("L_pc:")
        E(f"""v_lshlrev_b32 v2, 7, v0
v_min_u32 v3, L_code_end-L_pc-4, v2
global_load_dword v4, v3, s[{sT0}:{sT0+1}]
v_add_u32 v2, 32768, v2
v_min_u32 v3, L_code_end-L_pc-4, v2
global_load_dword v5, v3, s[{sT0}:{sT0+1}]""", "code")
        E(f"""s_and_b32 s{sT0}, s2, 7
s_lshr_b32 s{sT1}, s2, 3
s_and_b32 s{sI}, s{sT0}, 1
s_lshl_b32 s{sI}, s{sI}, 3
s_and_b32 s{sT2}, s{sT1}, 7
s_add_u32 s{sI}, s{sI}, s{sT2}
s_lshr_b32 s{sJ}, s{sT0}, 1
s_lshl_b32 s{sJ}, s{sJ}, 2
s_lshr_b32 s{sT2}, s{sT1}, 3
s_add_u32 s{sJ}, s{sJ}, s{sT2}
s_lshl_b32 s{sRB}, s{sT0}, 2
s_and_b32 s{sT2}, s{sT1}, 3
s_add_u32 s{sRB}, s{sRB}, s{sT2}
s_lshr_b32 s{sCB}, s{sT1}, 2
s_lshl_b32 s{sLW}, s{sW}, 13
s_add_u32 s{sT0}, s{sJ}, 1
s_and_b32 s{sT0}, s{sT0}, 2
s_lshl_b32 s{sROT}, s{sT0}, 15""")
        E(f"""v_lshrrev_b32 v6, 4, v{vLN}
v_and_b32 v7, 15, v{vLN}""")
        for n in range(4):
            E(f"""v_add_u32 v12, {4*n}, v6
v_xor_b32 v13, v12, v7
v_lshlrev_b32 v13, 4, v13
v_lshl_add_u32 v{8+n}, v12, 10, v13""")
            if n: E(f"v_subrev_u32 v{8+n}, {n*1024}, v{8+n}")
        E(f"""v_lshrrev_b32 v12, 2, v{vLN}
v_mul_u32_u24 v12, 3072, v12
v_and_b32 v13, 3, v{vLN}
v_lshl_add_u32 v12, v13, 4, v12
s_lshl_b32 s{sT0}, s{sJ}, 6
v_add_u32 v{vT+5}, s{sT0}, v12
s_lshl_b32 s{sT3}, s{sI}, 17
s_lshl_b32 s{sT0}, s{sW}, 15
s_add_u32 s{sT3}, s{sT3}, s{sT0}
s_mul_i32 s{sT2}, s{sW}, {128*3072}
s_waitcnt lgkmcnt(0)""")
        def mk(d, base, nbytes):
            E(f"""s_mov_b32 s{d}, s{base}
s_and_b32 s{d+1}, s{base+1}, 0xffff
s_mov_b32 s{d+2}, {nbytes}
s_mov_b32 s{d+3}, 0x00020000""")
        mk(SX, 8, 2097152)
        self.stamp(1)
        for kc in range(4):
            for half in range(2):
                E(f"""s_xor_b32 s{sT0}, s{sROT}, {kc*32768}
s_add_u32 s{sT0}, s{sT0}, {half*4096}
s_add_u32 m0, s{sT0}, s{sLW}
s_add_u32 s{sT1}, s{sT3}, {half*16384 + kc*256}""")
                for n in range(4):
                    E(f"buffer_load_dwordx4 v{8+n}, {srd(SX)}, s{sT1} offen offset:{n*1024} lds", f"x{kc}")
        mk(SQKV, 10, 1572864); mk(SPHI, 12, 16384)
        E(f"v_lshlrev_b32 v{vL16}, 4, v{vLN}\ns_lshl_b32 s{sT1}, s{sJ}, 10")
        E(f"buffer_load_dwordx4 {vr(vWP,4)}, v{vL16}, {srd(SPHI)}, s{sT1} offen", "wphi")
        for w_, f in self.dma_batch_items("qkv", 1, R4, "st0"): f(E)
        mk(SD, 22, 1835008); mk(SO, 14, 524288); mk(SWS, 28, 268435456); mk(SOUT, 24, 2097152)
        mk(SDBG, 26, 256)
        E(f"""s_cmp_ge_u32 s{sW}, 2
s_cselect_b32 s{SF}, s20, s18
s_cselect_b32 s{SF+1}, s21, s19
s_and_b32 s{SF+1}, s{SF+1}, 0xffff
s_mov_b32 s{SF+2}, 1835008
s_mov_b32 s{SF+3}, 0x00020000""")
        E(f"""s_or_b32 s{sT0}, s2, s{sW}
s_cmp_lg_u32 s{sT0}, 0
s_cbranch_scc1 L_noep""")
        E.raw(f"""    s_or_b32 s{sEP}, s{sEP}, 1
    v_mov_b32 v12, s{sEP}
    v_mov_b32 v13, s{sEP+1}
    v_mov_b32 v14, 0
    buffer_store_dwordx2 v[12:13], v14, {srd(SDBG)}, 0 offen sc1
    s_waitcnt vmcnt(0)
L_noep:""")
        E(f"""v_and_b32 v14, 31, v{vLN}
v_lshrrev_b32 v15, 5, v{vLN}
v_bfe_u32 v16, v{vLN}, 4, 1
v_bfe_u32 v17, v{vLN}, 2, 2
v_and_b32 v18, 3, v{vLN}
v_lshl_add_u32 v19, v15, 3, v17""")
        E(f"""s_and_b32 s{sT0}, s{sJ}, 3
s_lshl_b32 s{sT0}, s{sT0}, 2
s_lshr_b32 s{sTA}, 0x6280, s{sT0}
s_and_b32 s{sTA}, s{sTA}, 15
s_lshr_b32 s{sTB}, 0xa0c4, s{sT0}
s_and_b32 s{sTB}, s{sTB}, 15
s_lshr_b32 s{sT0}, s{sJ}, 1
s_mul_i32 s{sT0}, s{sT0}, 14
s_add_u32 s{sTA}, s{sTA}, s{sT0}
s_add_u32 s{sTB}, s{sTB}, s{sT0}
s_lshr_b32 s{sT1}, s{sW}, 1""")
        E(f"""v_lshrrev_b32 v20, 3, v{vLN}
v_mul_u32_u24 v20, 3584, v20
v_lshlrev_b32 v21, 1, v16
v_add_u32 v21, s{sT1}, v21
v_lshlrev_b32 v21, 1, v21
v_and_b32 v22, 7, v{vLN}
v_xor_b32 v21, v21, v22
v_lshl_add_u32 v20, v21, 4, v20
s_lshl_b32 s{sT0}, s{sTA}, 5
v_add_u32 v{vFA}, s{sT0}, v20
v_lshrrev_b32 v21, 2, v{vLN}
v_mul_u32_u24 v21, 3584, v21
s_lshl_b32 s{sT0}, s{sT1}, 1
v_xor_b32 v23, s{sT0}, v18
v_lshl_add_u32 v21, v23, 4, v21
s_cmp_lg_u32 s{sROT}, 0
s_cselect_b64 vcc, -1, 0
v_cndmask_b32 v20, v20, v21, vcc
s_lshl_b32 s{sT0}, s{sTB}, 5
v_add_u32 v{vFB}, s{sT0}, v20
s_and_b32 s{sT0}, s{sW}, 1
s_mul_i32 s{sFAo}, s{sT0}, {64*3584}
s_lshr_b32 s{sFBo}, s{sROT}, 16
s_lshl_b32 s{sFBo}, s{sFAo}, s{sFBo}""")
        E(f"""v_lshlrev_b32 v21, 2, v16
v_xor_b32 v21, v21, v22
v_lshlrev_b32 v21, 4, v21
v_lshrrev_b32 v20, 3, v{vLN}
v_lshl_add_u32 v20, v20, 10, v21
s_lshl_b32 s{sT0}, s{sCB}, 7
v_add_u32 v{vW2}, s{sT0}, v20
s_and_b32 s{sT0}, s{sW}, 1
s_mul_i32 s{sW2d}, s{sT0}, {896*1024}
s_lshl_b32 s{sW2o}, s{sT0}, 18
s_lshl_b32 s{sT0}, s{sT1}, 13
s_sub_u32 s{sT0}, s{sT0}, 4096
s_add_u32 s{sW2d}, s{sW2d}, s{sT0}
s_add_u32 s{sW2o}, s{sW2o}, s{sT0}""")
        E(f"""v_lshlrev_b32 v20, 6, v19
v_lshl_add_u32 v20, v16, 5, v20
v_lshl_add_u32 v20, v18, 3, v20
v_add_u32 v{vRqK}, {R4}, v20
v_add_u32 v{vRqL}, s{sROT}, v20
v_lshlrev_b32 v20, 7, v19
v_lshl_add_u32 v20, v16, 14, v20
v_lshl_add_u32 v20, v18, 3, v20
v_lshrrev_b32 v21, 1, v17
v_lshl_add_u32 v21, v21, 1, v16
s_xor_b32 s{sT0}, s{sROT}, 65536""")
        for t in range(4):
            E(f"""v_xor_b32 v22, {t}, v21
v_lshl_add_u32 v22, v22, 5, v20
v_add_u32 v{vR4L+t}, s{sROT}, v22
v_add_u32 v{vR4H+t}, s{sT0}, v22""")
        E(f"""v_lshlrev_b32 v20, 6, v19
v_lshl_add_u32 v20, v16, 14, v20
v_lshl_add_u32 v20, v18, 3, v20
v_add_u32 v20, s{sT0}, v20
v_lshl_add_u32 v{vR2}, v16, 5, v20
v_xor_b32 v22, 1, v16
v_lshl_add_u32 v{vR2+1}, v22, 5, v20""")
        E(f"""s_lshl_b32 s{sT0}, s{sW}, 10
v_lshl_add_u32 v20, v14, 5, s{sT0}
v_lshl_add_u32 v21, v15, 12, v20
v_add_u32 v{vPhiW}, {PHI_L}, v21
v_lshl_add_u32 v21, v15, 3, v20
v_add_u32 v{vVW}, {V_L}, v21
v_lshlrev_b32 v20, 3, v{vLN}
s_lshl_b32 s{sT0}, s{sW}, 12
s_add_u32 s{sT0}, s{sT0}, {PHI_L}
v_add_u32 v{vKvA}, s{sT0}, v20
s_lshl_b32 s{sT0}, s{sT1}, 12
s_add_u32 s{sT0}, s{sT0}, {V_L}
v_add_u32 v{vKvB}, s{sT0}, v20""")
        E(f"""v_mul_u32_u24 v20, 640, v6
v_lshl_add_u32 v20, v7, 4, v20
s_and_b32 s{sT0}, s{sW}, 1
s_mul_i32 s{sT0}, s{sT0}, 272
v_add_u32 v{vKVst}, s{sT0}, v20
v_min_u32 v20, 16, v14
v_lshlrev_b32 v20, 4, v20
v_mul_u32_u24 v21, 272, v15
s_mul_i32 s{sT0}, s{sW}, 640
v_add3_u32 v{vKVld}, v20, v21, s{sT0}
s_lshl_b32 s{sT0}, s{sT1}, 10
s_and_b32 s{sCNT}, s{sW}, 1
s_lshl_b32 s{sCNT}, s{sCNT}, 3
s_add_u32 s{sT0}, s{sT0}, s{sCNT}
s_add_u32 s{sT0}, s{sT0}, {KVF_L}
v_add_u32 v{vKVFw}, s{sT0}, v{vL16}
v_add_u32 v{vKVFr}, {KVF_L}, v{vL16}""")
        E(f"""v_lshl_add_u32 v20, v15, 2, v17
v_lshlrev_b32 v20, 5, v20
v_lshrrev_b32 v21, 1, v18
v_lshl_add_u32 v21, v16, 1, v21
v_lshl_add_u32 v20, v21, 3, v20
s_lshl_b32 s{sT0}, s{sW}, 10
s_add_u32 s{sT0}, s{sT0}, {WPHI_L}
v_add_u32 v{vWPr}, s{sT0}, v20
v_and_b32 v20, 1, v17
v_mov_b32 v21, 0x80008000
v_mul_lo_u32 v{vSGN}, v20, v21
v_mov_b32 v20, 0x3f803f80""")
        for k in range(4): E(f"v_accvgpr_write_b32 a{aONE+k}, v20")
        E(f"""s_lshl_b32 s{sHst}, s{sI}, 2
s_add_u32 s{sHst}, s{sHst}, s{sW}
s_mul_i32 s{sHst}, s{sHst}, {144*1024}
s_lshl_b32 s{sTA}, s{sTA}, 10
s_add_u32 s{sTA}, s{sTA}, s{sHst}
s_lshl_b32 s{sTB}, s{sTB}, 10
s_add_u32 s{sTB}, s{sTB}, s{sHst}""")
        XR = 136
        E(f"""v_and_b32 v20, 15, v14
v_xor_b32 v20, v20, v15
v_lshlrev_b32 v20, 4, v20
v_lshl_add_u32 v20, v14, 8, v20
s_add_u32 s{sT0}, s{sLW}, s{sROT}
v_add_u32 v20, s{sT0}, v20""")
        for s7 in range(8):
            E(f"v_xor_b32 v{XR+s7}, {s7*32}, v20")
        ONE = 144; SM = 148; SQ = 152
        E(f"v_mov_b32 v{ONE}, 0x3f803f80")
        for k in range(4):
            E(f"v_mov_b32 v{SM+k}, 0\nv_mov_b32 v{SQ+k}, 0")
        refill = [("qkv", 2, "st1"), ("qkv", 0, "st2"), ("fa", 0, "st3"), ("fa", 1, "st4")]
        pend = []
        for kc in range(4):
            E.vm_wait(f"x{kc}")
            if kc == 0: self.stamp(2)
            if kc == 2:
                for s7 in range(8): E(f"v_xor_b32 v{XR+s7}, 65536, v{XR+s7}")
            for s7 in range(8):
                E(f"ds_read_b128 {vr(32*kc+4*s7,4)}, v{XR+s7} offset:{(kc&1)*32768}", f"xr{kc}_{s7}")
            k_, a_, tg = refill[kc]
            items = self.dma_batch_items(k_, a_, ("rot", kc), tg)
            for s7 in range(8):
                E.lg_wait(f"xr{kc}_{s7}")
                for q in range(4):
                    r = 32*kc + 4*s7 + q
                    E(f"v_dot2_f32_bf16 v{SM+q}, v{r}, v{ONE}, v{SM+q}")
                    E(f"v_dot2_f32_bf16 v{SQ+q}, v{r}, v{r}, v{SQ+q}")
            if kc < 3:
                for w_, f in items: f(E)
            else:
                pend = items
        self.stamp(3)
        E(f"""s_nop 2
v_add_f32 v{SM}, v{SM}, v{SM+1}
v_add_f32 v{SM+2}, v{SM+2}, v{SM+3}
v_add_f32 v{SQ}, v{SQ}, v{SQ+1}
v_add_f32 v{SQ+2}, v{SQ+2}, v{SQ+3}
v_add_f32 v{SM}, v{SM}, v{SM+2}
v_add_f32 v{SQ}, v{SQ}, v{SQ+2}
v_mov_b32 v{SM+1}, v{SM}
v_mov_b32 v{SQ+1}, v{SQ}""")
        pend[0][1](E)
        E(f"""v_permlane32_swap_b32 v{SM}, v{SM+1}
v_permlane32_swap_b32 v{SQ}, v{SQ+1}""")
        pend[1][1](E)
        E(f"""v_add_f32 v{SM}, v{SM}, v{SM+1}
v_add_f32 v{SQ}, v{SQ}, v{SQ+1}
v_mul_f32 v{SM}, 0x3b000000, v{SM}
v_mul_f32 v{SQ}, 0x3b000000, v{SQ}
v_fma_f32 v{SQ}, -v{SM}, v{SM}, v{SQ}
v_max_f32 v{SQ}, 0, v{SQ}
v_add_f32 v{SQ}, 0x3727c5ac, v{SQ}
v_rsq_f32 v{SQ}, v{SQ}
v_mov_b32 v{SQ+1}, 0
v_cvt_pk_bf16_f32 v{SQ+2}, v{SQ}, v{SQ+1}
v_lshlrev_b32 v{SQ+3}, 16, v{SQ+2}
v_mul_f32 v{SM+1}, -v{SM}, v{SQ+3}""".replace("v_mul_f32 v%d, -v%d" % (SM+1, SM), "v_mul_f32_e64 v%d, -v%d" % (SM+1, SM)))
        RLO, RHI, CC = SQ+2, SQ+3, SM+1
        TM = 160
        def d(r):
            s = TM + 2*(r % 4)
            E(f"v_dot2_f32_bf16 v{s}, v{r}, v{RLO}, v{CC}")
            E(f"v_dot2_f32_bf16 v{s+1}, v{r}, v{RHI}, v{CC}")
        def c(r):
            s = TM + 2*(r % 4)
            E(f"v_cvt_pk_bf16_f32 v{TM+8+(r%2)}, v{s}, v{s+1}")
        def w(r):
            E(f"v_accvgpr_write_b32 a{aXN+r}, v{TM+8+(r%2)}")
        d(0); d(1)
        pi = 2
        for r in range(128):
            if r + 2 < 128: d(r + 2)
            c(r)
            if r >= 1: w(r - 1)
            if r % 8 == 7 and pi < 8:
                pend[pi][1](E); pi += 1
        w(127)
        self.stamp(4)
        if self.dump == "xn":
            self.dump_regs([f"a{i}" for i in range(128)])

    def dump_regs(self, regs):
        E = self.E
        E.vm_all(); E.lg_all()
        E.fence()
        E(f"""s_lshl_b32 s{sT0}, s2, 2
s_add_u32 s{sT0}, s{sT0}, s{sW}
s_mul_i32 s{sT0}, s{sT0}, {256*256}
s_add_u32 s{sT0}, s{sT0}, {DUMP}
v_lshrrev_b32 v{vT+4}, 2, v{vL16}""")
        for n, r in enumerate(regs):
            E(f"s_add_u32 s{sT1}, s{sT0}, {n*256}")
            E(f"buffer_store_dword {r}, v{vT+4}, {srd(SWS)}, s{sT1} offen")
        E.vm_all()
        E("s_endpgm")

    def softmax_items(self, P, dst):
        it = []
        A = lambda w, s: it.append((w, lambda E, s=s: E(s)))
        m, t, s0, s1 = vT, vT+1, vT+2, vT+3
        A(1, f"v_max3_f32 v{m}, v{P}, v{P+1}, v{P+2}")
        A(1, f"v_max3_f32 v{t}, v{P+3}, v{P+4}, v{P+5}")
        A(1, f"v_max3_f32 v{m}, v{m}, v{P+6}, v{P+7}")
        A(1, f"v_max3_f32 v{t}, v{t}, v{P+8}, v{P+9}")
        A(1, f"v_max3_f32 v{m}, v{m}, v{P+10}, v{P+11}")
        A(1, f"v_max3_f32 v{t}, v{t}, v{P+12}, v{P+13}")
        A(1, f"v_max3_f32 v{m}, v{m}, v{P+14}, v{P+15}")
        A(1, f"v_max_f32 v{m}, v{m}, v{t}")
        A(1, f"v_mul_f32 v{t}, 0xbfb8aa3b, v{m}")
        for i in range(16):
            A(1, f"v_fma_f32 v{P+i}, v{P+i}, s{sT3}, v{t}")
        for i in range(16):
            A(2, f"v_exp_f32 v{P+i}, v{P+i}")
            if i == 2: A(1, f"v_add_f32 v{s0}, v{P}, v{P+1}")
            elif i == 4: A(1, f"v_add_f32 v{s1}, v{P+2}, v{P+3}")
            elif i >= 5: A(1, f"v_add_f32 v{s0 if i%2 else s1}, v{s0 if i%2 else s1}, v{P+i-1}")
        A(1, f"v_add_f32 v{s0}, v{s0}, v{s1}")
        A(1, f"v_add_f32 v{s0}, v{s0}, v{P+15}")
        A(2, f"v_rcp_f32 v{s0}, v{s0}")
        for i in range(16):
            A(1, f"v_mul_f32 v{P+i}, v{P+i}, v{s0}")
            if i % 2 == 1 and i >= 3:
                A(1, f"v_cvt_pk_bf16_f32 v{dst+(i-3)//2}, v{P+i-3}, v{P+i-2}")
        A(1, f"v_cvt_pk_bf16_f32 v{dst+7}, v{P+14}, v{P+15}")
        return it

    def h_epilogue_items(self, acc, ntile, sbase, tag):
        it = []
        A = lambda w, s, tg=None: it.append((w, lambda E, s=s, tg=tg: E(s, tg)))
        for t in range(ntile):
            b = acc + 16*t
            for r in range(8): A(1, f"v_max_f32 v{b+r}, 0, v{b+r}")
            for r in range(8): A(1, f"v_mul_f32 v{b+r}, v{b+r}, v{b+8+r}")
            for r in range(4): A(1, f"v_cvt_pk_bf16_f32 v{b+r}, v{b+2*r}, v{b+2*r+1}")
            A(1, f"buffer_store_dwordx4 {vr(b,4)}, v{vL16}, {srd(SWS)}, s{sbase} offen offset:{t*1024} sc1", tag)
        return it

    def flag_items(self, wait_tag, addr_fn):
        def f(E):
            E.vm_wait(wait_tag)
            addr_fn(E)
            E(f"v_mov_b32 v{vT+4}, s{sEP}\nv_mov_b32 v{vT+5}, s{sEP+1}\nv_mov_b32 v{vT+3}, 0")
            E(f"buffer_store_dwordx2 {vr(vT+4,2)}, v{vT+3}, {srd(SWS)}, s{sT1} offen sc1", "flag")
        return [(8, f)]

    def phase1(self, var):
        E = self.E
        NS = 11 if var == 8 else 9
        rot = 0 if var == 8 else 65536
        slots = []
        for s in range(32): slots.append((vK, s, vRqK, s*1024, 256))
        for s in range(32): slots.append((vV, s, vRqL, s*1024, 256))
        for s in range(32): slots.append((vQ, s, vRqL, 32768 + s*1024, 256))
        def four(stage, acc, sa):
            rho = (stage - 1) % 4
            for idx in range(32):
                sl, t = idx >> 2, idx & 3
                base = (vR4L if rho < 2 else vR4H) + t
                slots.append((acc + 16*t, 8*sa + sl, base, (rho & 1)*32768 + sl*2048, 512))
        for sa in range(4): four(3 + sa, ACCA, sa)
        if var == 8:
            for sa in range(4): four(7 + sa, ACCB, sa)
        else:
            for sb in range(2):
                for idx in range(32):
                    sl, t = idx >> 1, idx & 1
                    slots.append((ACCB + 16*t, 16*sb + sl, vR2 + t, sb*32768 + sl*1024, 256))
        N = len(slots)
        F = []
        def I(w, s, tg=None): F.append(("i", w, lambda E, s=s, tg=tg: E(s, tg)))
        def X(items):
            for w, f in items: F.append(("i", w, f))
        def Fn(w, f): F.append(("i", w, f))
        def gate(slot): F.append(("g", slot))
        def dead(slot): F.append(("d", slot))
        mid = lambda s: 32*s + 16
        gate(34)
        def epf(E):
            lp = self.newlabel("ep"); ok = self.newlabel("epok")
            E.vm_wait("ep")
            E(f"v_readfirstlane_b32 s{sEP}, v{vT+4}\nv_readfirstlane_b32 s{sEP+1}, v{vT+5}\ns_mov_b32 s{sCNT}, 0\ns_cmp_lg_u32 s{sEP}, 0\ns_cbranch_scc1 {ok}")
            E.raw(f"""{lp}:
    buffer_load_dwordx2 {vr(vT+4,2)}, off, {srd(SDBG)}, 0 sc1
    s_waitcnt vmcnt(0)
    v_readfirstlane_b32 s{sEP}, v{vT+4}
    v_readfirstlane_b32 s{sEP+1}, v{vT+5}
    s_add_u32 s{sCNT}, s{sCNT}, 1
    s_cmp_gt_u32 s{sCNT}, 0x40000
    s_cbranch_scc1 {ok}
    s_cmp_eq_u32 s{sEP}, 0
    s_cbranch_scc1 {lp}
{ok}:""")
        I(1, f"s_mov_b32 s{sT3}, {LOG2E}")
        for hh in range(2):
            I(1, f"ds_read_b64_tr_b16 {vr(vWP+4*hh,2)}, v{vWPr} offset:{512*hh}", "wp")
            I(1, f"ds_read_b64_tr_b16 {vr(vWP+4*hh+2,2)}, v{vWPr} offset:{512*hh+256}", "wp")
        for r in range(8): I(1, f"v_cvt_pk_bf16_f32 v{vKB+r}, v{vK+2*r}, v{vK+2*r+1}")
        Fn(1, lambda E: E.lg_wait("wp"))
        for r in range(8): I(1, f"v_xor_b32 v{vWP+r}, v{vWP+r}, v{vSGN}")
        I(8, f"v_mfma_f32_32x32x16_bf16 {vr(vP,16)}, {vr(vWP,4)}, {vr(vKB,4)}, 0")
        I(8, f"v_mfma_f32_32x32x16_bf16 {vr(vK,16)}, {vr(vWP+4,4)}, {vr(vKB+4,4)}, 0")
        F.append(("lag", 3))
        X(self.softmax_items(vP, vKB))
        gate(mid(1))
        I(1, f"ds_write_b128 v{vPhiW}, {vr(vKB,4)}", "att")
        I(1, f"ds_write_b128 v{vPhiW}, {vr(vKB+4,4)} offset:16", "att")
        gate(64 + 3)
        for r in range(8): I(1, f"v_cvt_pk_bf16_f32 v{vV+r}, v{vV+2*r}, v{vV+2*r+1}")
        for g in range(4):
            I(1, f"ds_write_b64 v{vVW}, {vr(vV+2*g,2)} offset:{(g>>1)*4096 + (g&1)*16}", "att")
        X(self.softmax_items(vK, vKB))
        I(1, f"ds_write_b128 v{vPhiW}, {vr(vKB,4)} offset:8192", "att")
        I(1, f"ds_write_b128 v{vPhiW}, {vr(vKB+4,4)} offset:8208", "att")
        Fn(1, lambda E: E.lg_wait("att"))
        KVB = self.kvbar
        dead(mid(KVB))
        gate(mid(KVB))
        Fn(6, epf)
        for st in range(4):
            for h2 in range(2):
                I(1, f"ds_read_b64_tr_b16 {ar(aKA+4*st+2*h2,2)}, v{vKvA} offset:{st*1024+h2*512}", f"kv{st}")
                I(1, f"ds_read_b64_tr_b16 {ar(aKB+4*st+2*h2,2)}, v{vKvB} offset:{st*1024+h2*512}", f"kv{st}")
        for r in range(8): I(1, f"v_cvt_pk_bf16_f32 v{vKB+r}, v{vQ+2*r}, v{vQ+2*r+1}")
        for st in range(4):
            Fn(1, lambda E, st=st: E.lg_wait(f"kv{st}"))
            I(4, f"v_mfma_f32_16x16x32_bf16 {ar(aDKV,4)}, {ar(aKA+4*st,4)}, {ar(aKB+4*st,4)}, {ar(aDKV,4) if st else 0}")
            I(4, f"v_mfma_f32_16x16x32_bf16 {ar(aDZ,4)}, {ar(aKA+4*st,4)}, {ar(aONE,4)}, {ar(aDZ,4) if st else 0}")
        I(8, f"v_mfma_f32_32x32x16_bf16 {vr(vP,16)}, {vr(vWP,4)}, {vr(vKB,4)}, 0")
        I(8, f"v_mfma_f32_32x32x16_bf16 {vr(vK,16)}, {vr(vWP+4,4)}, {vr(vKB+4,4)}, 0")
        def kvst(E):
            E(f"""s_lshl_b32 s{sT0}, s{sJ}, 1
s_lshr_b32 s{sT1}, s{sW}, 1
s_add_u32 s{sT0}, s{sT0}, s{sT1}
s_lshl_b32 s{sT0}, s{sT0}, 4
s_add_u32 s{sT0}, s{sT0}, s{sI}
s_mul_i32 s{sT0}, s{sT0}, 2560
s_add_u32 s{sT0}, s{sT0}, {KVP}
v_and_b32 v{vT+4}, 0xf0, v{vL16}
v_sub_u32 v{vT+4}, v{vKVst}, v{vT+4}""")
            E(f"buffer_store_dwordx4 {ar(aDKV,4)}, v{vKVst}, {srd(SWS)}, s{sT0} offen sc1", "kvst")
            E(f"buffer_store_dwordx4 {ar(aDZ,4)}, v{vT+4}, {srd(SWS)}, s{sT0} offen offset:256 sc1", "kvst")
        Fn(11, kvst)
        sq0 = self.softmax_items(vP, vPHQ)
        X(sq0)
        def f1addr(E):
            E(f"""s_lshl_b32 s{sT0}, s{sI}, 2
s_add_u32 s{sT0}, s{sT0}, s{sW}
s_lshl_b32 s{sT0}, s{sT0}, 3
s_lshl_b32 s{sT1}, s{sJ}, 9
s_add_u32 s{sT1}, s{sT1}, s{sT0}
s_add_u32 s{sT1}, s{sT1}, {FL1}""")
        X(self.flag_items("kvst", f1addr))
        X(self.softmax_items(vK, vPHQ + 8))
        gate(7*32 + 4)
        X(self.h_epilogue_items(ACCA, 4, sTA, "hA"))
        def pollissue(E):
            E(f"s_lshl_b32 s{sT2}, s{sJ}, 9\ns_add_u32 s{sT2}, s{sT2}, {FL1}\nv_lshrrev_b32 v{vKB}, 1, v{vL16}")
            E(f"buffer_load_dwordx2 {vr(vKB+2,2)}, v{vKB}, {srd(SWS)}, s{sT2} offen sc1", "p1")
        gate(mid(self.pollmid) + self.polllag)
        def fladdr(base):
            def g(E):
                E(f"""s_lshl_b32 s{sT1}, s{sI}, 2
s_add_u32 s{sT1}, s{sT1}, s{sW}
s_lshl_b32 s{sT1}, s{sT1}, 4
s_add_u32 s{sT1}, s{sT1}, s{sJ}
s_lshl_b32 s{sT1}, s{sT1}, 3
s_add_u32 s{sT1}, s{sT1}, {base}""")
            return g
        Fn(5, lambda E: self.poll_check(E, vKB+2, f"buffer_load_dwordx2 {vr(vKB+2,2)}, v{vKB}, {srd(SWS)}, s{sT2} offen sc1", "p1"))
        X(self.flag_items("hA", fladdr(FLA)))
        bufs = [ACCA, vK]
        Fn(3, lambda E: E(f"s_mul_i32 s{sT2}, s{sJ}, {2*16*2560}\ns_add_u32 s{sT2}, s{sT2}, {KVP}"))
        for hh in range(2):
            for ii in range(16):
                def ld(E, hh=hh, ii=ii):
                    E(f"s_add_u32 s{sT1}, s{sT2}, {(hh*16+ii)*2560}")
                    E(f"buffer_load_dwordx4 {vr(bufs[hh]+4*ii,4)}, v{vKVld}, {srd(SWS)}, s{sT1} offen sc1", f"pl{hh}_{ii}")
                Fn(2, ld)
        F.append(("lag", self.ldlag))
        for hh in range(2):
            b = bufs[hh]
            for ii in range(1, 16):
                if ii % 4 == 1 or ii == 15:
                    Fn(1, lambda E, hh=hh, ii=ii: E.vm_wait(f"pl{hh}_{min(ii+3,15)}"))
                for q in range(4):
                    if ii == 1: continue
                    d_ = b + 4*(ii % 2) + q
                    I(1, f"v_add_f32 v{d_}, v{d_}, v{b+4*ii+q}")
            for q in range(4): I(1, f"v_add_f32 v{b+q}, v{b+q}, v{b+4+q}")
            I(1, f"v_cvt_pk_bf16_f32 v{b}, v{b}, v{b+1}")
            I(1, f"v_cvt_pk_bf16_f32 v{b+1}, v{b+2}, v{b+3}")
            I(1, f"ds_write_b64 v{vKVFw}, {vr(b,2)} offset:{hh*2048}", "kvfw")
        Fn(1, lambda E: E.lg_wait("kvfw"))
        F.append(("obar",))
        def o_items():
            it = []
            A = lambda w, s, tg=None: it.append((w, lambda E, s=s, tg=tg: E(s, tg)))
            for hh in range(2):
                for fr in range(2):
                    A(1, f"ds_read_b128 {ar(aKVF+8*hh+4*fr,4)}, v{vKVFr} offset:{hh*2048+fr*1024}", "kvfr")
            it.append((1, lambda E: E.lg_wait("kvfr")))
            for fr in range(2):
                for hh in range(2):
                    D = vK + 16*hh
                    A(8, f"v_mfma_f32_32x32x16_bf16 {vr(D,16)}, {ar(aKVF+8*hh+4*fr,4)}, {vr(vPHQ+8*hh+4*fr,4)}, {vr(D,16) if fr else 0}")
            A(3, f"s_lshl_b32 s{sT2}, s{sJ}, 11\ns_add_u32 s{sT2}, s{sT2}, s{sHst}\ns_add_u32 s{sT2}, s{sT2}, {112*1024}")
            for hh in range(2):
                D = vK + 16*hh
                A(1, f"v_add_f32 v{D+8}, 0x358637bd, v{D+8}")
                A(2, f"v_rcp_f32 v{D+8}, v{D+8}")
            for hh in range(2):
                D = vK + 16*hh
                for r in range(8): A(1, f"v_mul_f32 v{D+r}, v{D+r}, v{D+8}")
                for r in range(4): A(1, f"v_cvt_pk_bf16_f32 v{D+r}, v{D+2*r}, v{D+2*r+1}")
                A(1, f"buffer_store_dwordx4 {vr(D,4)}, v{vL16}, {srd(SWS)}, s{sT2} offen offset:{hh*1024} sc1", "hB")
            return it

        def stage_dma(s):
            phys = (((s - 1) % 4) * 32768) ^ rot
            if s <= 6: return self.dma_batch_items("fa", s - 3, phys, f"st{s}")
            return self.dma_batch_items("fb8" if var == 8 else "fb6", s - 7, phys, f"st{s}")
        GREG = [2, 3, 0, 4, 1, 2, 3, 0, 4]
        self.GREG = GREG
        def mid_dma(s):
            pre = []
            if s == 0:
                def f(E):
                    E(f"s_lshl_b32 s{sT0}, s{sW}, 10\ns_add_u32 s{sT0}, s{sT0}, {WPHI_L}\nv_add_u32 v{vT}, s{sT0}, v{vL16}")
                    E(f"ds_write_b128 v{vT}, {vr(vWP,4)}", "wpw")
                return [(4, f)]
            if s == 1: return []
            if s == 2:
                pre = [(1, lambda E: E(f"buffer_load_dwordx2 {vr(vT+4,2)}, off, {srd(SDBG)}, 0 sc1", "ep"))]
            if s == self.pollmid:
                pre = [(4, pollissue)]
            if s + 3 < NS: return pre + stage_dma(s + 3)
            g = s + 3 - NS
            return pre + self.dma_batch_items("w2", g, GREG[g]*32768, f"G{g}")

        PD = 5
        def rd(idx):
            acc, s, base, off, d2 = slots[idx]
            fr = aFR + 4*(idx % NFR)
            E(f"ds_read_b64_tr_b16 {ar(fr,2)}, v{base} offset:{off}", f"f{idx}")
            E(f"ds_read_b64_tr_b16 {ar(fr+2,2)}, v{base} offset:{off+d2}", f"f{idx}")
        E.vm_wait("st0")
        E("s_barrier")
        for idx in range(PD): rd(idx)
        hi_q = []
        state = {"lag": 0, "obar_ready": False, "obar_done": False}
        def drain(budget, idx, force_until=None):
            while True:
                if hi_q and (budget > 0 or force_until is not None):
                    w, f = hi_q.pop(0); f(E); budget -= w; continue
                if not F: return
                it = F[0]
                if force_until is None and budget <= 0: return
                if it[0] == "g":
                    if idx >= it[1] or idx >= 10**6: F.pop(0); continue
                    assert force_until is None, f"deadline {force_until} blocked by gate {it[1]}"
                    return
                if it[0] == "d":
                    if force_until is not None and it[1] == force_until:
                        F.pop(0); return
                    F.pop(0); continue
                if it[0] == "lag":
                    F.pop(0)
                    if force_until is None and idx < 10**6: F.insert(0, ("g", idx + it[1]))
                    continue
                if it[0] == "obar":
                    state["obar_ready"] = True
                    return
                F.pop(0); it[2](E); budget -= it[1]
        for idx in range(N):
            s = idx >> 5
            if idx % 32 == 16:
                if any(it[0] == "d" and it[1] == idx for it in F):
                    drain(0, idx, force_until=idx)
                if s + 1 < NS: E.vm_wait(f"st{s+1}")
                E("s_barrier")
                self.E.comment(f"---- mid stage {s}")
                if state["obar_ready"] and not state["obar_done"]:
                    state["obar_done"] = True
                    F.pop(0)
                    X(o_items())
                hi_q.extend(mid_dma(s))
            acc, sx, base, off, d2 = slots[idx]
            fr = aFR + 4*(idx % NFR)
            if idx % 2 == 0: E.lg_wait(f"f{min(idx+1, N-1)}")
            else: E.lg_wait(f"f{idx}")
            E(f"v_mfma_f32_32x32x16_bf16 {vr(acc,16)}, {ar(fr,4)}, {ar(aXN+4*sx,4)}, {vr(acc,16) if sx else 0}")
            if idx + PD < N: rd(idx + PD)
            drain(self.quota[idx % len(self.quota)], idx)
            if idx == 32*3 - 1: self.stamp(5)
            if self.dump == "kvq" and idx == 95:
                self.dump_regs([f"v{i}" for i in range(128, 256)]); return
        self.stamp(6)
        print(f"variant {var}: leftover fillers at end:", sum(it[1] for it in F if it[0] == "i"), "obar_done", state["obar_done"], file=sys.stderr)
        while hi_q:
            w, f = hi_q.pop(0); f(E)
        for w, f in self.h_epilogue_items(ACCB, 4 if var == 8 else 2, sTB, "hB"): f(E)
        drain(10**6, 10**6)
        need_o = not state["obar_done"]
        if need_o:
            assert state["obar_ready"]
            F.pop(0)
            E("s_barrier")
            for w, f in o_items(): f(E)
        assert not F
        E.lg_all()
        E.vm_wait("G1")
        E("s_barrier")
        for g in (3, 4):
            for w, f in self.dma_batch_items("w2", g, GREG[g]*32768, f"G{g}"): f(E)
        for w, f in self.flag_items("hB", fladdr(FLB)): f(E)
        self.stamp(7)

    def phase2(self):
        E = self.E
        GREG = self.GREG
        DN, SS = 0, 32
        BB = 64; NB = 40
        vA = [224, 225, 226, 227, 228, 229]
        vXo, vPF = 231, 246
        vX = 234
        vPD = 242
        E(f"""v_lshrrev_b32 v0, 4, v{vL16}
v_lshrrev_b32 v1, 5, v0
v_bfe_u32 v2, v0, 4, 1
v_bfe_u32 v3, v0, 2, 2
v_and_b32 v4, 3, v0
v_lshl_add_u32 v5, v1, 2, v3
v_lshlrev_b32 v5, 7, v5
v_lshl_add_u32 v5, v2, 5, v5
v_lshl_add_u32 v5, v4, 3, v5
v_lshrrev_b32 v6, 1, v3
v_lshl_add_u32 v5, v6, 6, v5
s_and_b32 s{sT0}, s{sW}, 1
s_lshl_b32 s{sT1}, s{sT0}, 13
v_add_u32 v{vA[0]}, s{sT1}, v5
v_xor_b32 v{vA[1]}, 64, v{vA[0]}
v_add_u32 v{vA[2]}, 65536, v{vA[0]}
v_add_u32 v{vA[3]}, 65536, v{vA[1]}
v_add_u32 v{vA[4]}, 131072, v{vA[0]}
v_add_u32 v{vA[5]}, 131072, v{vA[1]}
s_lshl_b32 s{sT2}, s{sRB}, 1
s_lshr_b32 s{sT1}, s{sW}, 1
s_add_u32 s{sT2}, s{sT2}, s{sT1}
s_mul_i32 s{sH2}, s{sT2}, 144
s_mul_i32 s{sT1}, s{sT0}, 56
s_add_u32 s{sT1}, s{sT1}, s{sH2}
s_lshl_b32 s{sT3}, s{sT0}, 4
s_add_u32 s{sO2}, s{sH2}, s{sT3}
s_add_u32 s{sO2}, s{sO2}, 112
s_lshl_b32 s{sO2}, s{sO2}, 10
s_lshl_b32 s{sH2}, s{sT1}, 10
s_lshl_b32 s{sT3}, s{sT2}, 7
s_lshl_b32 s{sT1}, s{sT0}, 6
s_add_u32 s{sT3}, s{sT3}, s{sT1}""")
        E(f"""v_and_b32 v7, 7, v0
v_lshlrev_b32 v{vPF}, 3, v7
v_and_b32 v7, 3, v0
v_lshrrev_b32 v8, 1, v7
v_lshl_add_u32 v7, v8, 1, v7
v_add_u32 v7, 1, v7
v_lshlrev_b32 v{vPF+1}, 3, v7
s_add_u32 s{sTA}, s{sT3}, {FLA}
s_add_u32 s{sTB}, s{sT3}, {FLB}""")
        pA = f"buffer_load_dwordx2 {vr(vPD,2)}, v{vPF}, {srd(SWS)}, s{sTA} offen sc1"
        pE = f"buffer_load_dwordx2 {vr(vPD+2,2)}, v{vPF+1}, {srd(SWS)}, s{sTB} offen sc1"
        pL = f"buffer_load_dwordx2 {vr(vPD,2)}, v{vPF}, {srd(SWS)}, s{sTB} offen sc1"
        E(pA, "pA"); E(pE, "pE")
        E(f"""v_and_b32 v7, 31, v0
v_lshlrev_b32 v7, 10, v7
v_lshl_add_u32 v{vXo}, v1, 3, v7
s_lshl_b32 s{sT2}, s{sT2}, 15
s_lshl_b32 s{sT1}, s{sCB}, 7
s_add_u32 s{sT2}, s{sT2}, s{sT1}
s_lshl_b32 s{sT1}, s{sT0}, 6
s_add_u32 s{sFAo}, s{sT2}, s{sT1}""")
        def wa(u, rh, ch):
            g, ul = u >> 3, u & 7
            a = GREG[g]*32768 + rh*16384 + ul*1024
            return vA[2*(a >> 16) + ch], a & 0xffff
        def rdW(u, dst, tag):
            for ch in range(2):
                for rh in range(2):
                    b, off = wa(u, rh, ch)
                    E(f"ds_read_b64_tr_b16 {ar(dst+4*ch+2*rh,2)}, v{b} offset:{off}", tag)
        for u in range(16): rdW(u, 8*u, f"w{u}")
        def bload(u):
            typ, rel = STEPS[u]
            base = sH2 if typ == "h" else sO2
            E(f"s_add_u32 s{sT1}, s{base}, {rel*1024}")
            E(f"buffer_load_dwordx4 {vr(BB+4*(u%NB),4)}, v{vL16}, {srd(SWS)}, s{sT1} offen sc1", f"b{u}")
        self.poll_check(E, vPD, pA, "pA")
        for u in range(8): bload(u)
        E.lg_all()
        E.vm_wait("G2")
        E("s_barrier")
        self.stamp(8)
        for w, f in self.dma_batch_items("w2", 5, GREG[5]*32768, "G5"): f(E)
        for u in range(8, 24): bload(u)
        for w, f in self.dma_batch_items("w2", 6, GREG[6]*32768, "G6"): f(E)
        for u in range(24, 32): bload(u)
        self.poll_check(E, vPD+2, pE, "pE")
        nextb = 32
        RING = 128; NR = 8
        PW = 3
        def wreg(u): return 8*u if u < 16 else RING + 8*(u % NR)
        nextw = 16
        late_ok = False
        for u in range(72):
            if u == 22:
                E.vm_wait("G6"); E("s_barrier")
            if u == 32:
                E("s_barrier")
                for g in (7, 8):
                    for w, f in self.dma_batch_items("w2", g, GREG[g]*32768, f"G{g}"): f(E)
                for g in range(4):
                    E(f"buffer_load_dwordx2 {vr(vX+2*g,2)}, v{vXo}, {srd(SX)}, s{sFAo} offen offset:{g*16}", "xt")
            if u == self.upoll: E(pL, "pL")
            if u == self.upoll + self.upolllag:
                self.poll_check(E, vPD, pL, "pL"); late_ok = True
            if u == 52:
                E.vm_wait("G8"); E("s_barrier")
            lim = 48 if not late_ok else 72
            k = 0
            while nextb < lim and nextb < u + NB and k < 3:
                bload(nextb); nextb += 1; k += 1
            wl = 24 if u < 22 else (56 if u < 52 else 72)
            while nextw < min(u + PW + 1, wl):
                rdW(nextw, wreg(nextw), f"w{nextw}"); nextw += 1
            assert nextb > u and nextw > u, (u, nextb, nextw)
            E.vm_wait(f"b{u}")
            E.lg_wait(f"w{u}")
            typ, rel = STEPS[u]
            first = (u == FIRST[typ])
            for ch in range(2):
                D = (DN if typ == "h" else SS) + 16*ch
                E(f"v_mfma_f32_32x32x16_bf16 {vr(D,16)}, {ar(wreg(u)+4*ch,4)}, {vr(BB+4*(u%NB),4)}, {0 if first else vr(D,16)}")
        self.stamp(5)
        E("s_barrier")
        lk1 = self.newlabel("k1"); lj = self.newlabel("kj")
        E(f"""v_add_u32 v{vA[0]}, s{sLW}, v{vL16}
s_xor_b32 s{sT0}, s{sLW}, 8192
v_add_u32 v{vA[1]}, s{sT0}, v{vL16}
s_and_b32 s{sT0}, s{sW}, 1
s_cmp_lg_u32 s{sT0}, 0""")
        E.fence()
        E(f"s_cbranch_scc1 {lk1}")
        for q in range(4):
            E(f"ds_write_b128 v{vA[0]}, {vr(DN+16+4*q,4)} offset:{q*1024}")
            E(f"ds_write_b128 v{vA[0]}, {vr(SS+16+4*q,4)} offset:{4096+q*1024}")
        E(f"s_branch {lj}")
        E.label(lk1)
        for q in range(4):
            E(f"ds_write_b128 v{vA[0]}, {vr(DN+4*q,4)} offset:{q*1024}")
            E(f"ds_write_b128 v{vA[0]}, {vr(SS+4*q,4)} offset:{4096+q*1024}")
        E("s_nop 1")
        for r in range(16):
            E(f"v_mov_b32 v{DN+r}, v{DN+16+r}\nv_mov_b32 v{SS+r}, v{SS+16+r}")
        E.label(lj)
        E("s_waitcnt lgkmcnt(0)"); E.lgq.clear()
        E("s_barrier")
        RX = 64
        for q in range(4):
            E(f"ds_read_b128 {vr(RX+4*q,4)}, v{vA[1]} offset:{q*1024}", f"e{q}")
        for q in range(4):
            E(f"ds_read_b128 {vr(RX+16+4*q,4)}, v{vA[1]} offset:{4096+q*1024}", f"e{4+q}")
        E(f"s_mov_b32 s{sT3}, 0xbfb8aa3b")
        TT = 96
        for q in range(4):
            E.lg_wait(f"e{q}")
            for r in range(4*q, 4*q+4): E(f"v_add_f32 v{DN+r}, v{DN+r}, v{RX+r}")
            for r in range(4*q, 4*q+4): E(f"v_mul_f32 v{TT+r}, s{sT3}, v{DN+r}")
            for r in range(4*q, 4*q+4): E(f"v_exp_f32 v{TT+r}, v{TT+r}")
        for r in range(16): E(f"v_add_f32 v{TT+r}, 1.0, v{TT+r}")
        for r in range(16): E(f"v_rcp_f32 v{TT+r}, v{TT+r}")
        E.lg_all()
        for r in range(16): E(f"v_add_f32 v{SS+r}, v{SS+r}, v{RX+16+r}")
        for r in range(16): E(f"v_mul_f32 v{DN+r}, v{DN+r}, v{TT+r}")
        E.vm_wait("xt")
        for g in range(4):
            for d_ in range(2):
                E(f"v_lshlrev_b32 v{TT+4*g+2*d_}, 16, v{vX+2*g+d_}")
                E(f"v_and_b32 v{TT+4*g+2*d_+1}, 0xffff0000, v{vX+2*g+d_}")
        for r in range(16): E(f"v_fma_f32 v{DN+r}, v{DN+r}, v{SS+r}, v{TT+r}")
        for r in range(8): E(f"v_cvt_pk_bf16_f32 v{RX+r}, v{DN+2*r}, v{DN+2*r+1}")
        E(f"v_lshrrev_b32 v{TT}, 9, v{vL16}\nv_lshl_add_u32 v{vXo}, v{TT}, 3, v{vXo}")
        for pr in range(2):
            E(f"v_permlane32_swap_b32 v{RX+4*pr}, v{RX+4*pr+2}")
            E(f"v_permlane32_swap_b32 v{RX+4*pr+1}, v{RX+4*pr+3}")
        for pr in range(2):
            E(f"buffer_store_dwordx4 {vr(RX+4*pr,4)}, v{vXo}, {srd(SOUT)}, s{sFAo} offen offset:{pr*32}", "out")
        if self.stamps:
            E.vm_all()
            E.raw(f"    s_memtime s[{sST+2*3}:{sST+2*3+1}]\n    s_memrealtime s[{sTA}:{sTA+1}]\n    s_waitcnt lgkmcnt(0)")
            E(f"""s_lshl_b32 s{sT0}, s2, 2
s_add_u32 s{sT0}, s{sT0}, s{sW}
s_mul_i32 s{sT0}, s{sT0}, 80
s_add_u32 s{sT0}, s{sT0}, {STAMP}
v_mov_b32 v2, 0""")
            for n, s in enumerate([sTA] + [sST + 2*k for k in (0, 1, 2, 4, 6, 7, 8, 5, 3)]):
                E(f"v_mov_b32 v0, s{s}\nv_mov_b32 v1, s{s+1}")
                E(f"buffer_store_dwordx2 v[0:1], v2, {srd(SWS)}, s{sT0} offen offset:{n*8}")
                E("s_nop 1")

    def build(self):
        E = self.E
        self.kvbar = 3; self.pollmid = 7; self.polllag = 20; self.ldlag = 10
        self.upoll = 30; self.upolllag = 10
        self.prologue()
        if self.dump != "xn":
            E(f"s_cmp_lg_u32 s{sROT}, 0")
            E("s_cbranch_scc1 L_var6")
            import copy
            save = (list(E.vmq), set(E.vm_done), list(E.lgq), set(E.lg_done), list(E.hist), E.pos)
            self.phase1(8)
            tail8 = list(E.vmq)
            E("s_branch L_phase2")
            E.raw(".p2align 6\nL_var6:")
            E.vmq, E.vm_done, E.lgq, E.lg_done, E.hist, E.pos = list(save[0]), set(save[1]), list(save[2]), set(save[3]), list(save[4]), save[5]
            self.phase1(6)
            tail6 = list(E.vmq)
            if self.dump is None:
                assert tail8 == tail6, (tail8, tail6)
                E.raw("L_phase2:")
                self.phase2()
            else:
                E.raw("L_phase2:")
        E.raw("L_end:\n    s_endpgm\nL_code_end:")
        E.raw(f"""
.section .rodata,"a"
.p2align 6
.amdhsa_kernel {NAME}_kernel
  .amdhsa_next_free_vgpr 512
  .amdhsa_next_free_sgpr 102
  .amdhsa_accum_offset 256
  .amdhsa_group_segment_fixed_size 0
  .amdhsa_kernarg_size 88
  .amdhsa_user_sgpr_count 2
  .amdhsa_user_sgpr_kernarg_segment_ptr 1
  .amdhsa_system_sgpr_workgroup_id_x 1
.end_amdhsa_kernel""")
        print("nops:", E.n_nops, E.count, file=sys.stderr)
        return E.text()

def make_steps():
    dA = [0, 8, 2, 6]; dB = [4, 12, 0, 10]
    A, early, late = [], [], []
    for jj in range(8):
        base = 14*(jj >> 1)
        A += [("h", base + dA[jj & 3] + t) for t in range(4)]
    for jj in (1, 2, 5, 6):
        base = 14*(jj >> 1)
        early += [("h", base + dB[jj & 3] + t) for t in range(2)]
    for jj in (1, 2, 5, 6):
        early += [("o", 2*jj + h) for h in range(2)]
    for jj in (0, 3, 4, 7):
        late += [("o", 2*jj + h) for h in range(2)]
    for jj in (0, 3, 4, 7):
        base = 14*(jj >> 1)
        late += [("h", base + dB[jj & 3] + t) for t in range(4)]
    s = A + early + late
    assert sorted(r for t, r in s if t == "h") == list(range(56)) and sorted(r for t, r in s if t == "o") == list(range(16))
    return s
STEPS = make_steps()
FIRST = {"h": 0, "o": min(u for u, (t, r) in enumerate(STEPS) if t == "o")}

if __name__ == "__main__":
    ap = argparse.ArgumentParser()
    ap.add_argument("-o", default="/dev/stdout")
    ap.add_argument("--stamps", action="store_true")
    ap.add_argument("--dump", default=None)
    a = ap.parse_args()
    g = Gen(stamps=a.stamps, dump=a.dump)
    open(a.o, "w").write(g.build())
```

```python
import sys, argparse
from emit import Emitter
NAME = "recurrent_scan__linear_kernel_hedgehog__glu_gated_reglu__prompt"

HB   = 0x0
KVP  = 0x900000
FL1  = 0xA40000
FLA  = 0xA42000
FLB  = 0xA44000
STAMP = 0x2000000
DUMP = 0x3000000
R4 = 131072
WPHI_L = R4
KVF_L = R4
PL = 1088; PR = 4*PL
PHI_L = R4 + 4096
V_L = PHI_L + 4*PR
LOG2E = 0x3fb8aa3b
GREG = [2, 3, 0, 4, 1, 2, 3, 0, 4]

sD0, sD1 = 0, 1
sW, sI, sJ, sROT, sCNT = 3, 4, 5, 6, 7
sRB, sCB = 30, 31
SX, SQKV, SF, SD, SO, SWS, SOUT, SDBG, SPHI = 32, 36, 40, 44, 48, 52, 56, 60, 64
sEP = 68
sT0, sT1, sT2, sT3 = 70, 71, 72, 73
sLW, sFAo, sFBo, sHst, sW2d, sW2o, sTA, sTB, sH2, sO2 = 74, 75, 76, 77, 78, 79, 80, 81, 82, 83
sQo, sXo, sM = 64, 65, 66
sQo, sXo, sM = 84, 85, 86
sFA2, sFB2, sOUT, sTCH, sF1w, sF1r, sFAw, sFBw, sKVw, sKVr, sOst, sWT = 8, 9, 10, 11, 12, 13, 14, 15, 16, 17, 18, 19
sST = 88
NSTAMP = 7
def srd(n): return f"s[{n}:{n+3}]"

ACCA, ACCB = 0, 64
vK, vV, vQ, vP = 128, 144, 160, 176
vPHQ = 192
vKB = 208
vWP = 216
vT = 224
vL16 = 230
vFA, vFB, vW2 = 231, 232, 233
vRqK, vRqL = 234, 235
vR4L, vR4H = 236, 240
vR2 = 244
vPhiW, vVW = 246, 247
vKvA, vKvB = 248, 249
vKVst, vKVld, vKVFw, vKVFr = 250, 251, 252, 253
vWPr, vSGN = 254, 255
vQo = vT + 5
aXN = 0
aXT = 128
aKVF = 160
aKA, aKB = 176, 192
aONE = 208
aDKV, aDZ = 212, 216
aFR = 220; NFR = 9

def vr(b, n): return f"v[{b}:{b+n-1}]" if n > 1 else f"v{b}"
def ar(b, n): return f"a[{b}:{b+n-1}]" if n > 1 else f"a{b}"
def lines(s): return [l.strip() for l in s.strip().split("\n") if l.strip()]

class Gen:
    def __init__(self, stamps=None, dump=None, quota=(4, 3), opt=None):
        self.opt = opt or {}
        self.E = Emitter()
        self.stamps = stamps; self.dump = dump
        self.quota = quota
        self.lbl = 0
    def o(self, k, d): return self.opt.get(k, d)
    def newlabel(self, p):
        self.lbl += 1
        return f"L_{p}_{self.lbl}"
    def stamp(self, name):
        if self.stamps and name in self.stamps:
            k = self.stamps.index(name)
            self.E.raw(f"    s_memtime s[{sST+2*k}:{sST+2*k+1}]")

    def poll_check(self, E, vdata, reload_text, tag):
        ok = self.newlabel("pok"); lp = self.newlabel("plp")
        E.vm_wait(tag)
        E(f"v_cmp_eq_u64 vcc, s[{sEP}:{sEP+1}], {vr(vdata,2)}")
        E(f"s_mov_b32 s{sCNT}, 0")
        E("s_cmp_eq_u64 vcc, exec")
        E(f"s_cbranch_scc1 {ok}")
        E.raw(f"""{lp}:
    {reload_text}
    s_waitcnt vmcnt(0)
    v_cmp_eq_u64 vcc, s[{sEP}:{sEP+1}], {vr(vdata,2)}
    s_add_u32 s{sCNT}, s{sCNT}, 1
    s_cmp_gt_u32 s{sCNT}, 0x40000
    s_cbranch_scc1 {ok}
    s_cmp_eq_u64 vcc, exec
    s_cbranch_scc0 {lp}
{ok}:""")

    def dma(self, kind, arg, phys, tag):
        items = []
        for n in range(8):
            def f(E, n=n):
                if n % 4 == 0:
                    if isinstance(phys, tuple):
                        E(f"s_xor_b32 s{sD0}, s{sROT}, {phys[1]*32768 + n*1024}")
                        E(f"s_add_u32 m0, s{sD0}, s{sLW}")
                    else:
                        E(f"s_add_u32 m0, s{sLW}, {phys + n*1024}")
                c = (n % 4) * 1024
                if kind == "qkv":
                    E(f"s_add_u32 s{sD1}, s{sQo}, {arg*1024 + n*16*3072 - c}")
                    E(f"buffer_load_dwordx4 v{vQo}, {srd(SQKV)}, s{sD1} offen offset:{c} lds", tag)
                elif kind == "fa":
                    E(f"s_add_u32 s{sD1}, s{sFAo}, {(128*arg + 8*n)*3584 - c}")
                    E(f"buffer_load_dwordx4 v{vFA}, {srd(SF)}, s{sD1} offen offset:{c} lds", tag)
                elif kind == "fb8":
                    E(f"s_add_u32 s{sD1}, s{sFBo}, {(128*arg + 8*n)*3584 - c}")
                    E(f"buffer_load_dwordx4 v{vFB}, {srd(SF)}, s{sD1} offen offset:{c} lds", tag)
                elif kind == "fb6":
                    E(f"s_add_u32 s{sD1}, s{sFBo}, {(256*arg + 16*n)*3584 - c}")
                    E(f"buffer_load_dwordx4 v{vFB}, {srd(SF)}, s{sD1} offen offset:{c} lds", tag)
                elif kind == "w2":
                    typ, rel = STEPS[8*arg + n]
                    base = sW2d if typ == "h" else sW2o
                    E(f"s_add_u32 s{sD1}, s{base}, {rel*16*1024 + 4096 - c}")
                    E(f"buffer_load_dwordx4 v{vW2}, {srd(SD if typ == 'h' else SO)}, s{sD1} offen offset:{c} lds", tag)
                elif kind == "x":
                    if n % 4 == 0: E(f"s_add_u32 s{sD1}, s{sXo}, {(n//4)*16384 + arg*256}")
                    E(f"buffer_load_dwordx4 v{128+(n%4)}, {srd(SX)}, s{sD1} offen offset:{c} lds", tag)
            f.tag = tag
            items.append((3 if n % 4 == 0 else 2, f, 4 if kind in ("qkv", "fb6") else 2))
        return items

    def prologue(self):
        E = self.E
        E.raw(f"""; @launch grid=(256,1,1) block=(256,1,1) lds=163840
.amdgcn_target "amdgcn-amd-amdhsa--gfx950"
.text
.globl {NAME}_kernel
.p2align 8
.type {NAME}_kernel,@function
{NAME}_kernel:""")
        E(f"""s_cmp_ge_u32 s2, 256
s_cbranch_scc1 L_end
s_load_dwordx16 s[8:23], s[0:1], 0
s_load_dwordx4 s[24:27], s[0:1], 64
s_load_dwordx2 s[28:29], s[0:1], 80
s_memrealtime s[{sEP}:{sEP+1}]""")
        self.stamp("start")
        vLN = vT
        E(f"""v_lshrrev_b32 v1, 6, v0
v_and_b32 v{vLN}, 63, v0
v_readfirstlane_b32 s{sW}, v1
s_getpc_b64 s[{sT0}:{sT0+1}]""")
        E.raw("L_pc:")
        if self.o("touch", 1): E(f"""v_lshlrev_b32 v2, 7, v0
v_min_u32 v3, L_code_end-L_pc-4, v2
global_load_dword v4, v3, s[{sT0}:{sT0+1}]
v_add_u32 v2, 32768, v2
v_min_u32 v3, L_code_end-L_pc-4, v2
global_load_dword v5, v3, s[{sT0}:{sT0+1}]""", "code")
        E(f"""s_and_b32 s{sT0}, s2, 7
s_lshr_b32 s{sT1}, s2, 3
s_and_b32 s{sI}, s{sT0}, 1
s_lshl_b32 s{sI}, s{sI}, 3
s_and_b32 s{sT2}, s{sT1}, 7
s_add_u32 s{sI}, s{sI}, s{sT2}
s_lshr_b32 s{sJ}, s{sT0}, 1
s_lshl_b32 s{sJ}, s{sJ}, 2
s_lshr_b32 s{sT2}, s{sT1}, 3
s_add_u32 s{sJ}, s{sJ}, s{sT2}
s_lshl_b32 s{sRB}, s{sT0}, 2
s_and_b32 s{sT2}, s{sT1}, 3
s_add_u32 s{sRB}, s{sRB}, s{sT2}
s_lshr_b32 s{sCB}, s{sT1}, 2
s_lshl_b32 s{sLW}, s{sW}, 13
s_add_u32 s{sT0}, s{sJ}, 1
s_and_b32 s{sT0}, s{sT0}, 2
s_lshl_b32 s{sROT}, s{sT0}, 15
s_lshl_b32 s{sXo}, s{sI}, 17
s_lshl_b32 s{sT0}, s{sW}, 15
s_add_u32 s{sXo}, s{sXo}, s{sT0}
s_lshr_b32 s{sM}, s{sW}, 1
v_lshrrev_b32 v6, 4, v{vLN}
v_and_b32 v7, 15, v{vLN}""")
        for n in range(4):
            E(f"""v_add_u32 v12, {4*n}, v6
v_xor_b32 v13, v12, v7
v_lshlrev_b32 v13, 4, v13
v_lshl_add_u32 v{128+n}, v12, 10, v13""")
            if n: E(f"v_subrev_u32 v{128+n}, {n*1024}, v{128+n}")
        S = []
        S += lines(f"""
v_lshrrev_b32 v12, 2, v{vLN}
v_mul_u32_u24 v12, 3072, v12
v_and_b32 v18, 3, v{vLN}
v_lshl_add_u32 v12, v18, 4, v12
s_lshl_b32 s{sT0}, s{sJ}, 6
v_add_u32 v{vQo}, s{sT0}, v12
s_mul_i32 s{sQo}, s{sW}, {128*3072}
v_lshlrev_b32 v{vL16}, 4, v{vLN}
v_and_b32 v14, 31, v{vLN}
v_lshrrev_b32 v15, 5, v{vLN}
v_bfe_u32 v16, v{vLN}, 4, 1
v_bfe_u32 v17, v{vLN}, 2, 2
v_lshl_add_u32 v19, v15, 3, v17
v_and_b32 v20, 15, v14
v_xor_b32 v20, v20, v15
v_lshlrev_b32 v20, 4, v20
v_lshl_add_u32 v20, v14, 8, v20
s_add_u32 s{sT0}, s{sLW}, s{sROT}
v_add_u32 v20, s{sT0}, v20""")
        XR = 136; ONE = 144; SM = 148; SQ = 152
        for s7 in range(8): S.append(f"v_xor_b32 v{XR+s7}, {s7*32}, v20")
        S.append(f"v_mov_b32 v{ONE}, 0x3f803f80")
        for k in range(4): S += [f"v_mov_b32 v{SM+k}, 0", f"v_mov_b32 v{SQ+k}, 0", f"v_accvgpr_write_b32 a{aONE+k}, v{ONE}"]
        S += lines(f"""
s_and_b32 s{sT0}, s{sJ}, 3
s_lshl_b32 s{sT0}, s{sT0}, 2
s_lshr_b32 s{sTA}, 0x6280, s{sT0}
s_and_b32 s{sTA}, s{sTA}, 15
s_lshr_b32 s{sTB}, 0xa0c4, s{sT0}
s_and_b32 s{sTB}, s{sTB}, 15
s_lshr_b32 s{sT0}, s{sJ}, 1
s_mul_i32 s{sT0}, s{sT0}, 14
s_add_u32 s{sTA}, s{sTA}, s{sT0}
s_add_u32 s{sTB}, s{sTB}, s{sT0}
v_lshrrev_b32 v20, 3, v{vLN}
v_mul_u32_u24 v20, 3584, v20
v_lshlrev_b32 v21, 1, v16
v_add_u32 v21, s{sM}, v21
v_lshlrev_b32 v21, 1, v21
v_and_b32 v22, 7, v{vLN}
v_xor_b32 v21, v21, v22
v_lshl_add_u32 v20, v21, 4, v20
s_lshl_b32 s{sT0}, s{sTA}, 5
v_add_u32 v{vFA}, s{sT0}, v20
v_lshrrev_b32 v21, 2, v{vLN}
v_mul_u32_u24 v21, 3584, v21
s_lshl_b32 s{sT0}, s{sM}, 1
v_xor_b32 v23, s{sT0}, v18
v_lshl_add_u32 v21, v23, 4, v21
s_cmp_lg_u32 s{sROT}, 0 | s_cselect_b64 vcc, -1, 0
v_cndmask_b32 v20, v20, v21, vcc
s_lshl_b32 s{sT0}, s{sTB}, 5
v_add_u32 v{vFB}, s{sT0}, v20
s_and_b32 s{sT0}, s{sW}, 1
s_mul_i32 s{sFAo}, s{sT0}, {64*3584}
s_lshr_b32 s{sFBo}, s{sROT}, 16
s_lshl_b32 s{sFBo}, s{sFAo}, s{sFBo}
v_lshlrev_b32 v21, 2, v16
v_xor_b32 v21, v21, v22
v_lshlrev_b32 v21, 4, v21
v_lshrrev_b32 v20, 3, v{vLN}
v_lshl_add_u32 v20, v20, 10, v21
s_lshl_b32 s{sT0}, s{sCB}, 7
v_add_u32 v{vW2}, s{sT0}, v20
s_and_b32 s{sT0}, s{sW}, 1
s_mul_i32 s{sW2d}, s{sT0}, {896*1024}
s_lshl_b32 s{sW2o}, s{sT0}, 18
s_lshl_b32 s{sT0}, s{sM}, 13
s_sub_u32 s{sT0}, s{sT0}, 4096
s_add_u32 s{sW2d}, s{sW2d}, s{sT0}
s_add_u32 s{sW2o}, s{sW2o}, s{sT0}
v_lshlrev_b32 v20, 6, v19
v_lshl_add_u32 v20, v16, 5, v20
v_lshl_add_u32 v20, v18, 3, v20
v_add_u32 v{vRqK}, {R4}, v20
v_add_u32 v{vRqL}, s{sROT}, v20
v_lshlrev_b32 v20, 7, v19
v_lshl_add_u32 v20, v16, 14, v20
v_lshl_add_u32 v20, v18, 3, v20
v_lshrrev_b32 v21, 1, v17
v_lshl_add_u32 v21, v21, 1, v16
s_xor_b32 s{sT0}, s{sROT}, 65536""")
        for t in range(4):
            S += lines(f"""v_xor_b32 v22, {t}, v21
v_lshl_add_u32 v22, v22, 5, v20
v_add_u32 v{vR4L+t}, s{sROT}, v22
v_add_u32 v{vR4H+t}, s{sT0}, v22""")
        S += lines(f"""
v_lshlrev_b32 v20, 6, v19
v_lshl_add_u32 v20, v16, 14, v20
v_lshl_add_u32 v20, v18, 3, v20
v_add_u32 v20, s{sT0}, v20
v_lshl_add_u32 v{vR2}, v16, 5, v20
v_xor_b32 v22, 1, v16
v_lshl_add_u32 v{vR2+1}, v22, 5, v20
s_lshl_b32 s{sT0}, s{sW}, 8
v_lshl_add_u32 v20, v14, 3, s{sT0}
v_mul_u32_u24 v21, {PR}, v15
v_add3_u32 v{vPhiW}, v20, v21, 0
v_add_u32 v{vPhiW}, {PHI_L}, v{vPhiW}
v_mul_u32_u24 v21, {PL}, v15
v_add_u32 v21, {V_L}, v21
v_add_u32 v{vVW}, v20, v21
v_mul_u32_u24 v20, {PL}, v18
v_lshrrev_b32 v21, 2, v{vLN}
v_lshl_add_u32 v20, v21, 3, v20
s_mul_i32 s{sT0}, s{sW}, {PR}
s_add_u32 s{sT0}, s{sT0}, {PHI_L}
v_add_u32 v{vKvA}, s{sT0}, v20
s_mul_i32 s{sT0}, s{sM}, {PR}
s_add_u32 s{sT0}, s{sT0}, {V_L}
v_add_u32 v{vKvB}, s{sT0}, v20
v_mul_u32_u24 v20, 640, v6
v_lshl_add_u32 v20, v7, 4, v20
s_and_b32 s{sT0}, s{sW}, 1
s_mul_i32 s{sT0}, s{sT0}, 272
v_add_u32 v{vKVst}, s{sT0}, v20
v_min_u32 v20, 16, v14
v_lshlrev_b32 v20, 4, v20
v_mul_u32_u24 v21, 272, v15
s_mul_i32 s{sT0}, s{sW}, 640
v_add3_u32 v{vKVld}, v20, v21, s{sT0}
s_lshl_b32 s{sT0}, s{sM}, 10
s_and_b32 s{sT1}, s{sW}, 1
s_lshl_b32 s{sT1}, s{sT1}, 3
s_add_u32 s{sT0}, s{sT0}, s{sT1}
s_add_u32 s{sT0}, s{sT0}, {KVF_L}
v_add_u32 v{vKVFw}, s{sT0}, v{vL16}
v_add_u32 v{vKVFr}, {KVF_L}, v{vL16}
v_lshl_add_u32 v20, v15, 2, v17
v_lshlrev_b32 v20, 5, v20
v_lshrrev_b32 v21, 1, v18
v_lshl_add_u32 v21, v16, 1, v21
v_lshl_add_u32 v20, v21, 3, v20
s_lshl_b32 s{sT0}, s{sW}, 10
s_add_u32 s{sT0}, s{sT0}, {WPHI_L}
v_add_u32 v{vWPr}, s{sT0}, v20
v_and_b32 v20, 1, v17
v_mov_b32 v21, 0x80008000
v_mul_lo_u32 v{vSGN}, v20, v21
s_lshl_b32 s{sHst}, s{sI}, 2
s_add_u32 s{sHst}, s{sHst}, s{sW}
s_mul_i32 s{sHst}, s{sHst}, {144*1024}
s_lshl_b32 s{sTA}, s{sTA}, 10
s_add_u32 s{sTA}, s{sTA}, s{sHst}
s_lshl_b32 s{sTB}, s{sTB}, 10
s_add_u32 s{sTB}, s{sTB}, s{sHst}""")
        def mk(d, base, nbytes):
            return lines(f"""s_mov_b32 s{d}, s{base}
s_and_b32 s{d+1}, s{base+1}, 0xffff
s_mov_b32 s{d+2}, {nbytes}
s_mov_b32 s{d+3}, 0x00020000""")
        K = mk(SQKV, 10, 1572864) + mk(SPHI, 12, 16384) + mk(SD, 22, 1835008) + mk(SO, 14, 524288) + mk(SWS, 28, 268435456) + mk(SOUT, 24, 2097152)
        K += lines(f"""s_cmp_ge_u32 s{sW}, 2 | s_cselect_b32 s{SF}, s20, s18 | s_cselect_b32 s{SF+1}, s21, s19
s_and_b32 s{SF+1}, s{SF+1}, 0xffff
s_mov_b32 s{SF+2}, 1835008
s_mov_b32 s{SF+3}, 0x00020000""")
        K += lines(f"""
s_lshl_b32 s{sT0}, s{sI}, 2
s_add_u32 s{sT0}, s{sT0}, s{sW}
s_lshl_b32 s{sT1}, s{sT0}, 3
s_lshl_b32 s{sF1r}, s{sJ}, 9
s_add_u32 s{sF1r}, s{sF1r}, {FL1}
s_add_u32 s{sF1w}, s{sF1r}, s{sT1}
s_lshl_b32 s{sT0}, s{sT0}, 4
s_add_u32 s{sT0}, s{sT0}, s{sJ}
s_lshl_b32 s{sT0}, s{sT0}, 3
s_add_u32 s{sFAw}, s{sT0}, {FLA}
s_add_u32 s{sFBw}, s{sT0}, {FLB}
s_mul_i32 s{sKVr}, s{sJ}, {2*16*2560}
s_add_u32 s{sKVr}, s{sKVr}, {KVP}
s_lshl_b32 s{sT0}, s{sM}, 4
s_add_u32 s{sT0}, s{sT0}, s{sI}
s_mul_i32 s{sT0}, s{sT0}, 2560
s_add_u32 s{sKVw}, s{sT0}, s{sKVr}
s_lshl_b32 s{sOst}, s{sJ}, 11
s_add_u32 s{sOst}, s{sOst}, s{sHst}
s_add_u32 s{sOst}, s{sOst}, {112*1024}
s_and_b32 s{sT0}, s{sW}, 1
s_lshl_b32 s{sT2}, s{sRB}, 1
s_add_u32 s{sT2}, s{sT2}, s{sM}
s_mul_i32 s{sH2}, s{sT2}, 144
s_mul_i32 s{sT1}, s{sT0}, 56
s_add_u32 s{sT1}, s{sT1}, s{sH2}
s_lshl_b32 s{sT3}, s{sT0}, 4
s_add_u32 s{sO2}, s{sH2}, s{sT3}
s_add_u32 s{sO2}, s{sO2}, 112
s_lshl_b32 s{sO2}, s{sO2}, 10
s_lshl_b32 s{sH2}, s{sT1}, 10
s_lshl_b32 s{sT3}, s{sT2}, 7
s_lshl_b32 s{sT1}, s{sT0}, 6
s_add_u32 s{sT3}, s{sT3}, s{sT1}
s_add_u32 s{sFA2}, s{sT3}, {FLA}
s_add_u32 s{sFB2}, s{sT3}, {FLB}
s_lshl_b32 s{sT2}, s{sT2}, 15
s_lshl_b32 s{sT3}, s{sCB}, 7
s_add_u32 s{sT2}, s{sT2}, s{sT3}
s_add_u32 s{sOUT}, s{sT2}, s{sT1}
s_and_b32 s{sT0}, s{sCB}, 3
s_lshl_b32 s{sT0}, s{sT0}, 2
s_lshr_b32 s{sT1}, 0x6280, s{sT0}
s_and_b32 s{sT1}, s{sT1}, 15
s_lshr_b32 s{sT0}, s{sCB}, 1
s_mul_i32 s{sT0}, s{sT0}, 14
s_add_u32 s{sT0}, s{sT0}, s{sT1}
s_lshl_b32 s{sT0}, s{sT0}, 10
s_add_u32 s{sTCH}, s{sT0}, s{sH2}
s_and_b32 s{sT0}, s{sRB}, 3
s_lshl_b32 s{sT0}, s{sT0}, 2
s_add_u32 s{sWT}, s{sT0}, s{sW}
s_mov_b32 s{sT3}, {LOG2E}""")
        def em(l): E(l.replace(" | ", "\n"))
        n1 = self.o("pre", 110)
        for l in S[:n1]: em(l)
        rest = S[n1:] + K
        E("s_waitcnt lgkmcnt(0)")
        for l in mk(SX, 8, 2097152) + mk(SDBG, 26, 256): E(l)
        E(f"""s_or_b32 s{sCNT}, s2, s{sW}
s_cmp_lg_u32 s{sCNT}, 0
s_cbranch_scc1 L_noep""")
        E.raw(f"""    s_or_b32 s{sEP}, s{sEP}, 1
    v_mov_b32 v2, s{sEP}
    v_mov_b32 v3, s{sEP+1}
    buffer_store_dwordx2 v[2:3], off, {srd(SDBG)}, 0 sc1
L_noep:""")
        self.stamp("karg")
        xs = [it for kc in range(4) for it in self.dma("x", kc, ("rot", kc), f"x{kc}")]
        per = -(-len(rest) // 20)
        for n in range(24):
            xs[n][1](E)
            if n >= 4:
                for l in rest[:per]: em(l)
                rest = rest[per:]
        assert not rest
        E(f"s_lshl_b32 s{sD1}, s{sJ}, 10")
        E(f"buffer_load_dwordx4 {vr(vWP,4)}, v{vL16}, {srd(SPHI)}, s{sD1} offen", "wphi")
        self.stamp("xiss")
        kd = self.dma("qkv", 1, R4, "st0")
        vd = self.dma("qkv", 2, ("rot", 0), "st1")
        qd = self.dma("qkv", 0, ("rot", 1), "st2")
        inter = {0: xs[24:32], 1: kd[:4], 2: kd[4:], 3: vd[:2]}
        for kc in range(4):
            E.vm_wait(f"x{kc}")
            self.stamp(f"x{kc}")
            if kc == 2:
                for s7 in range(8): E(f"v_xor_b32 v{XR+s7}, 65536, v{XR+s7}")
            for s7 in range(8):
                E(f"ds_read_b128 {vr(32*kc+4*s7,4)}, v{XR+s7} offset:{(kc&1)*32768}", f"xr{kc}_{s7}")
            q_ = list(inter[kc]); step = 8 // len(q_)
            for s7 in range(8):
                if s7 % step == 0 and q_: q_.pop(0)[1](E)
                E.lg_wait(f"xr{kc}_{s7}")
                for q in range(4):
                    r = 32*kc + 4*s7 + q
                    E(f"v_dot2_f32_bf16 v{SM+q}, v{r}, v{ONE}, v{SM+q}")
                for q in range(4):
                    r = 32*kc + 4*s7 + q
                    E(f"v_dot2_f32_bf16 v{SQ+q}, v{r}, v{r}, v{SQ+q}")
        self.stamp("stats")
        pend = vd[2:] + qd
        E(f"""v_add_f32 v{SM}, v{SM}, v{SM+1}
v_add_f32 v{SM+2}, v{SM+2}, v{SM+3}
v_add_f32 v{SQ}, v{SQ}, v{SQ+1}
v_add_f32 v{SQ+2}, v{SQ+2}, v{SQ+3}
v_add_f32 v{SM}, v{SM}, v{SM+2}
v_add_f32 v{SQ}, v{SQ}, v{SQ+2}
v_mov_b32 v{SM+1}, v{SM}
v_mov_b32 v{SQ+1}, v{SQ}
v_permlane32_swap_b32 v{SM}, v{SM+1}
v_permlane32_swap_b32 v{SQ}, v{SQ+1}
v_add_f32 v{SM}, v{SM}, v{SM+1}
v_add_f32 v{SQ}, v{SQ}, v{SQ+1}
v_mul_f32 v{SM}, 0x3b000000, v{SM}
v_mul_f32 v{SQ}, 0x3b000000, v{SQ}
v_fma_f32 v{SQ}, -v{SM}, v{SM}, v{SQ}
v_max_f32 v{SQ}, 0, v{SQ}
v_add_f32 v{SQ}, 0x3727c5ac, v{SQ}
v_rsq_f32 v{SQ}, v{SQ}
v_mov_b32 v{SQ+1}, 0
v_cvt_pk_bf16_f32 v{SQ+2}, v{SQ}, v{SQ+1}
v_lshlrev_b32 v{SQ+3}, 16, v{SQ+2}
v_mul_f32_e64 v{SM+1}, -v{SM}, v{SQ+3}""")
        RLO, RHI, CC = SQ+2, SQ+3, SM+1
        TM = 160
        def d(r):
            s = TM + 2*(r % 4)
            E(f"v_dot2_f32_bf16 v{s}, v{r}, v{RLO}, v{CC}")
            E(f"v_dot2_f32_bf16 v{s+1}, v{r}, v{RHI}, v{CC}")
        def c(r): E(f"v_cvt_pk_bf16_f32 v{TM+8+(r%2)}, v{TM + 2*(r % 4)}, v{TM + 2*(r % 4)+1}")
        def w(r): E(f"v_accvgpr_write_b32 a{aXN+r}, v{TM+8+(r%2)}")
        d(0); d(1)
        for r in range(128):
            if r + 2 < 128: d(r + 2)
            c(r)
            if r >= 1: w(r - 1)
            if r % 9 == 0 and pend: pend.pop(0)[1](E)
        w(127)
        assert not pend
        self.stamp("ln")
        if self.dump == "xn":
            self.dump_regs([f"a{i}" for i in range(128)])

    def dump_regs(self, regs):
        E = self.E
        E.vm_all(); E.lg_all()
        E.fence()
        E(f"""s_lshl_b32 s{sT0}, s2, 2
s_add_u32 s{sT0}, s{sT0}, s{sW}
s_mul_i32 s{sT0}, s{sT0}, {256*256}
s_add_u32 s{sT0}, s{sT0}, {DUMP}
v_lshrrev_b32 v{vT+4}, 2, v{vL16}""")
        for n, r in enumerate(regs):
            E(f"s_add_u32 s{sT1}, s{sT0}, {n*256}")
            E(f"buffer_store_dword {r}, v{vT+4}, {srd(SWS)}, s{sT1} offen")
        E.vm_all()
        E("s_endpgm")

    def softmax_items(self, P, dst):
        it = []
        A = lambda w, s: it.append((w, lambda E, s=s: E(s), 0))
        m, t, s0, s1 = vT, vT+1, vT+2, vT+3
        A(1, f"v_max3_f32 v{m}, v{P}, v{P+1}, v{P+2}")
        A(1, f"v_max3_f32 v{t}, v{P+3}, v{P+4}, v{P+5}")
        A(1, f"v_max3_f32 v{m}, v{m}, v{P+6}, v{P+7}")
        A(1, f"v_max3_f32 v{t}, v{t}, v{P+8}, v{P+9}")
        A(1, f"v_max3_f32 v{m}, v{m}, v{P+10}, v{P+11}")
        A(1, f"v_max3_f32 v{t}, v{t}, v{P+12}, v{P+13}")
        A(1, f"v_max3_f32 v{m}, v{m}, v{P+14}, v{P+15}")
        A(1, f"v_max_f32 v{m}, v{m}, v{t}")
        A(1, f"v_mul_f32 v{t}, 0xbfb8aa3b, v{m}")
        for i in range(16):
            A(1, f"v_fma_f32 v{P+i}, v{P+i}, s{sT3}, v{t}")
        def addk(k):
            if k == 1: A(1, f"v_add_f32 v{s0}, v{P}, v{P+1}")
            elif k == 3: A(1, f"v_add_f32 v{s1}, v{P+2}, v{P+3}")
            elif k >= 4: A(1, f"v_add_f32 v{s0 if k%2 else s1}, v{s0 if k%2 else s1}, v{P+k}")
        for i in range(16):
            A(2, f"v_exp_f32 v{P+i}, v{P+i}")
            if i >= 3: addk(i - 3)
        for k in (13, 14, 15): addk(k)
        A(1, f"v_add_f32 v{s0}, v{s0}, v{s1}")
        A(2, f"v_rcp_f32 v{s0}, v{s0}")
        for i in range(16):
            A(1, f"v_mul_f32 v{P+i}, v{P+i}, v{s0}")
            if i % 2 == 1 and i >= 3:
                A(1, f"v_cvt_pk_bf16_f32 v{dst+(i-3)//2}, v{P+i-3}, v{P+i-2}")
        A(1, f"v_cvt_pk_bf16_f32 v{dst+7}, v{P+14}, v{P+15}")
        return it

    def h_epilogue_items(self, acc, ntile, sbase, tag):
        it = []
        A = lambda w, s, tg=None, vc=0: it.append((w, lambda E, s=s, tg=tg: E(s, tg), vc))
        for t in range(ntile):
            b = acc + 16*t
            for r in range(8): A(1, f"v_max_f32 v{b+r}, 0, v{b+r}")
            for r in range(8): A(1, f"v_mul_f32 v{b+r}, v{b+r}, v{b+8+r}")
            for r in range(4): A(1, f"v_cvt_pk_bf16_f32 v{b+r}, v{b+2*r}, v{b+2*r+1}")
            A(1, f"buffer_store_dwordx4 {vr(b,4)}, v{vL16}, {srd(SWS)}, s{sbase} offen offset:{t*1024} sc1", tag, 2)
        return it

    def flag_item(self, wait_tag, soff, vtmp):
        def f(E):
            E(f"v_mov_b32 v{vtmp}, s{sEP}\nv_mov_b32 v{vtmp+1}, s{sEP+1}")
            E.vm_wait(wait_tag)
            E(f"buffer_store_dwordx2 {vr(vtmp,2)}, off, {srd(SWS)}, s{soff} sc1", "flag")
        return (4, f, 1)

    def phase1(self, var):
        E = self.E
        NS = 11 if var == 8 else 9
        rot = 0 if var == 8 else 65536
        slots = []
        for s in range(32): slots.append((vK, s, vRqK, s*1024, 256))
        for s in range(32): slots.append((vV, s, vRqL, s*1024, 256))
        for s in range(32): slots.append((vQ, s, vRqL, 32768 + s*1024, 256))
        def four(stage, acc, sa):
            rho = (stage - 1) % 4
            for idx in range(32):
                sl, t = idx >> 2, idx & 3
                base = (vR4L if rho < 2 else vR4H) + t
                slots.append((acc + 16*t, 8*sa + sl, base, (rho & 1)*32768 + sl*2048, 512))
        for sa in range(4): four(3 + sa, ACCA, sa)
        if var == 8:
            for sa in range(4): four(7 + sa, ACCB, sa)
        else:
            for sb in range(2):
                for idx in range(32):
                    sl, t = idx >> 1, idx & 1
                    slots.append((ACCB + 16*t, 16*sb + sl, vR2 + t, sb*32768 + sl*1024, 256))
        N = len(slots)
        F = []
        def I(w, s, tg=None, vc=0): F.append(("i", w, lambda E, s=s, tg=tg: E(s, tg), vc))
        def X(items):
            for w, f, vc in items: F.append(("i", w, f, vc))
        def Fn(w, f, vc=0): F.append(("i", w, f, vc))
        def gate(slot): F.append(("g", slot))
        def dead(slot): F.append(("d", slot))
        def brk(): F.append(("brk",))
        mid = lambda s: 32*s + 16
        KVB = self.o("kvbar", 3)
        pollmid = self.o("pollmid8", 8) if var == 8 else self.o("pollmid6", 8)
        def epf(E):
            lp = self.newlabel("ep"); ok = self.newlabel("epok")
            E.vm_wait("ep")
            E(f"v_readfirstlane_b32 s{sEP}, v{vT+4}\nv_readfirstlane_b32 s{sEP+1}, v{vT+5}\ns_mov_b32 s{sCNT}, 0\ns_cmp_lg_u32 s{sEP}, 0\ns_cbranch_scc1 {ok}")
            E.raw(f"""{lp}:
    buffer_load_dwordx2 {vr(vT+4,2)}, off, {srd(SDBG)}, 0 sc1
    s_waitcnt vmcnt(0)
    v_readfirstlane_b32 s{sEP}, v{vT+4}
    v_readfirstlane_b32 s{sEP+1}, v{vT+5}
    s_add_u32 s{sCNT}, s{sCNT}, 1
    s_cmp_gt_u32 s{sCNT}, 0x40000
    s_cbranch_scc1 {ok}
    s_cmp_eq_u32 s{sEP}, 0
    s_cbranch_scc1 {lp}
{ok}:""")
        def w64(addr, reg, off):
            I(1, f"ds_write_b64 v{addr}, {vr(reg,2)} offset:{off}", "att"); brk()
        gate(mid(0) + 2)
        for hh in range(2):
            I(1, f"ds_read_b64_tr_b16 {vr(vWP+4*hh,2)}, v{vWPr} offset:{512*hh}", "wp")
            I(1, f"ds_read_b64_tr_b16 {vr(vWP+4*hh+2,2)}, v{vWPr} offset:{512*hh+256}", "wp")
        F.append(("lag", 4))
        Fn(1, lambda E: E.lg_wait("wp"))
        for r in range(8): I(1, f"v_xor_b32 v{vWP+r}, v{vWP+r}, v{vSGN}")
        gate(32 + 3)
        for r in range(8): I(1, f"v_cvt_pk_bf16_f32 v{vKB+r}, v{vK+2*r}, v{vK+2*r+1}")
        I(8, f"v_mfma_f32_32x32x16_bf16 {vr(vP,16)}, {vr(vWP,4)}, {vr(vKB,4)}, 0")
        I(8, f"v_mfma_f32_32x32x16_bf16 {vr(vK,16)}, {vr(vWP+4,4)}, {vr(vKB+4,4)}, 0")
        F.append(("lag", 2))
        X(self.softmax_items(vP, vKB))
        gate(mid(1))
        sk1 = self.softmax_items(vK, vP)
        def mix(writes, items):
            items = list(items)
            for wr in writes:
                X(items[:2]); items = items[2:]
                w64(*wr)
            X(items)
        mix([(vPhiW, vKB+2*c, c*PL) for c in range(4)], sk1[:24])
        gate(64 + 3)
        for r in range(8): I(1, f"v_cvt_pk_bf16_f32 v{vV+r}, v{vV+2*r}, v{vV+2*r+1}")
        mix([(vVW, vV+2*g, (g>>1)*PR + (g&1)*2*PL) for g in range(4)], sk1[24:])
        gate(96 + 3)
        qc = [(1, lambda E, r=r: E(f"v_cvt_pk_bf16_f32 v{vKB+r}, v{vQ+2*r}, v{vQ+2*r+1}"), 0) for r in range(8)]
        mix([(vPhiW, vP+2*c, 2*PR + c*PL) for c in range(4)], qc)
        Fn(1, lambda E: E.lg_wait("att"))
        dead(mid(KVB))
        I(8, f"v_mfma_f32_32x32x16_bf16 {vr(vP,16)}, {vr(vWP,4)}, {vr(vKB,4)}, 0")
        I(8, f"v_mfma_f32_32x32x16_bf16 {vr(vK,16)}, {vr(vWP+4,4)}, {vr(vKB+4,4)}, 0")
        gate(mid(KVB))
        for st in range(4):
            for h2 in range(2):
                I(1, f"ds_read_b64_tr_b16 {ar(aKA+4*st+2*h2,2)}, v{vKvA} offset:{st*256+h2*128}", f"kv{st}")
                I(1, f"ds_read_b64_tr_b16 {ar(aKB+4*st+2*h2,2)}, v{vKvB} offset:{st*256+h2*128}", f"kv{st}")
        Fn(6, epf)
        for st in range(4):
            Fn(0, lambda E, st=st: E.lg_wait(f"kv{st}"))
            I(4, f"v_mfma_f32_16x16x32_bf16 {ar(aDKV,4)}, {ar(aKA+4*st,4)}, {ar(aKB+4*st,4)}, {ar(aDKV,4) if st else 0}")
            I(4, f"v_mfma_f32_16x16x32_bf16 {ar(aDZ,4)}, {ar(aKA+4*st,4)}, {ar(aONE,4)}, {ar(aDZ,4) if st else 0}")
        sq0 = self.softmax_items(vP, vPHQ)
        I(2, f"v_and_b32 v{vT+4}, 0xf0, v{vL16}\nv_sub_u32 v{vT+4}, v{vKVst}, v{vT+4}")
        X(sq0[:6])
        I(1, f"buffer_store_dwordx4 {ar(aDKV,4)}, v{vKVst}, {srd(SWS)}, s{sKVw} offen sc1", "kvst", 1)
        I(1, f"buffer_store_dwordx4 {ar(aDZ,4)}, v{vT+4}, {srd(SWS)}, s{sKVw} offen offset:256 sc1", "kvst", 1)
        nf = self.o("f1lag", 70)
        X(sq0[6:nf])
        X([self.flag_item("kvst", sF1w, vT+4)])
        X(sq0[nf:])
        X(self.softmax_items(vK, vPHQ + 8))
        lo_q = []
        z = ACCB
        def xt(E):
            E(f"v_and_b32 v{z}, 0x1f0, v{vL16}\nv_lshlrev_b32 v{z}, 6, v{z}\nv_lshrrev_b32 v{z+1}, 9, v{vL16}\nv_lshl_add_u32 v{z}, v{z+1}, 3, v{z}")
        for g in range(4):
            def f(E, g=g):
                if g == 0: xt(E)
                E(f"buffer_load_dwordx2 {ar(aXT+2*g,2)}, v{z}, {srd(SX)}, s{sOUT} offen offset:{g*16}", "xt")
            lo_q.append((5 if g == 0 else 1, f, 4))
        if self.o("w2touch", 1):
            def t0(E):
                E(f"v_lshlrev_b32 v{z+1}, 6, v{vL16}\ns_lshl_b32 s{sT0}, s{sCB}, 7\ns_mul_i32 s{sT1}, s{sWT}, {112*1024}\ns_add_u32 s{sT1}, s{sT1}, s{sT0}\ns_lshl_b32 s{sT2}, s{sWT}, 15\ns_add_u32 s{sT2}, s{sT2}, s{sT0}\nv_and_b32 v{z+2}, 0x7fff, v{z+1}")
                E(f"buffer_load_dword a136, v{z+1}, {srd(SD)}, s{sT1} offen", "tch")
            lo_q.append((8, t0, 16))
            lo_q.append((2, lambda E: E(f"s_add_u32 s{sT1}, s{sT1}, {48*1024}\nbuffer_load_dword a136, v{z+1}, {srd(SD)}, s{sT1} offen", "tch"), 16))
            lo_q.append((1, lambda E: E(f"buffer_load_dword a136, v{z+2}, {srd(SO)}, s{sT2} offen", "tch"), 8))
        gate(7*32 + 4)
        X(self.h_epilogue_items(ACCA, 4, sTA, "hA"))
        p1 = f"buffer_load_dwordx2 {vr(vKB+2,2)}, v{vKB}, {srd(SWS)}, s{sF1r} offen sc1"
        def pollissue(E):
            E(f"v_lshrrev_b32 v{vKB}, 1, v{vL16}")
            E(p1, "p1")
        gate(mid(pollmid) + self.o("polllag", 14))
        X([self.flag_item("hA", sFAw, vT+4)])
        Fn(4, lambda E: self.poll_check(E, vKB+2, p1, "p1"))
        bufs = [ACCA, vK]
        for hh in range(2):
            for ii in range(16):
                def ld(E, hh=hh, ii=ii):
                    E(f"s_add_u32 s{sD1}, s{sKVr}, {(hh*16+ii)*2560}")
                    E(f"buffer_load_dwordx4 {vr(bufs[hh]+4*ii,4)}, v{vKVld}, {srd(SWS)}, s{sD1} offen sc1", f"pl{hh}_{ii}")
                Fn(2, ld, 1)
        F.append(("lag", self.o("ldlag", 4)))
        for hh in range(2):
            b = bufs[hh]
            for ii in range(2, 16):
                if ii % 4 == 2:
                    Fn(1, lambda E, hh=hh, ii=ii: E.vm_wait(f"pl{hh}_{min(ii+3,15)}"))
                for q in range(4):
                    d_ = b + 4*(ii % 2) + q
                    I(1, f"v_add_f32 v{d_}, v{d_}, v{b+4*ii+q}")
            for q in range(4): I(1, f"v_add_f32 v{b+q}, v{b+q}, v{b+4+q}")
            I(1, f"v_cvt_pk_bf16_f32 v{b}, v{b}, v{b+1}")
            I(1, f"v_cvt_pk_bf16_f32 v{b+1}, v{b+2}, v{b+3}")
            I(1, f"ds_write_b64 v{vKVFw}, {vr(b,2)} offset:{hh*2048}", "kvfw")
        Fn(1, lambda E: E.lg_wait("kvfw"))
        F.append(("obar",))
        def o_items():
            it = []
            A = lambda w, s, tg=None, vc=0: it.append((w, lambda E, s=s, tg=tg: E(s, tg), vc))
            for hh in range(2):
                for fr in range(2):
                    A(1, f"ds_read_b128 {ar(aKVF+8*hh+4*fr,4)}, v{vKVFr} offset:{hh*2048+fr*1024}", "kvfr")
            it.append((1, lambda E: E.lg_wait("kvfr"), 0))
            for fr in range(2):
                for hh in range(2):
                    D = vK + 16*hh
                    A(8, f"v_mfma_f32_32x32x16_bf16 {vr(D,16)}, {ar(aKVF+8*hh+4*fr,4)}, {vr(vPHQ+8*hh+4*fr,4)}, {vr(D,16) if fr else 0}")
            for hh in range(2):
                D = vK + 16*hh
                A(1, f"v_add_f32 v{D+8}, 0x358637bd, v{D+8}")
                A(2, f"v_rcp_f32 v{D+8}, v{D+8}")
            for hh in range(2):
                D = vK + 16*hh
                for r in range(8): A(1, f"v_mul_f32 v{D+r}, v{D+r}, v{D+8}")
                for r in range(4): A(1, f"v_cvt_pk_bf16_f32 v{D+r}, v{D+2*r}, v{D+2*r+1}")
                A(1, f"buffer_store_dwordx4 {vr(D,4)}, v{vL16}, {srd(SWS)}, s{sOst} offen offset:{hh*1024} sc1", "ost", 2)
            return it
        def stage_dma(s):
            phys = (((s - 1) % 4) * 32768) ^ rot
            if s <= 6: return self.dma("fa", s - 3, phys, f"st{s}")
            return self.dma("fb8" if var == 8 else "fb6", s - 7, phys, f"st{s}")
        self.pA = f"buffer_load_dwordx2 {vr(vWP+2,2)}, v{vWP}, {srd(SWS)}, s{sFA2} offen sc1"
        def pAissue(E):
            E(f"v_lshrrev_b32 v{vWP}, 1, v{vL16}\nv_and_b32 v{vWP}, 63, v{vWP}")
            E(self.pA, "pA")
        def mid_dma(s):
            pre = []
            if s == 0:
                def f(E):
                    E(f"s_lshl_b32 s{sT0}, s{sW}, 10\ns_add_u32 s{sT0}, s{sT0}, {WPHI_L}\nv_add_u32 v{vT}, s{sT0}, v{vL16}")
                    E(f"ds_write_b128 v{vT}, {vr(vWP,4)}", "wpw")
                f(E)
                return stage_dma(4)
            if s == 1: return []
            if s == 2: pre = [(1, lambda E: E(f"buffer_load_dwordx2 {vr(vT+4,2)}, off, {srd(SDBG)}, 0 sc1", "ep"), 1)]
            if s == pollmid: pre = [(2, pollissue, 1)]
            if s == NS - 1: pre = pre + [(3, pAissue, 1)]
            if s + 3 < NS: return pre + stage_dma(s + 3)
            g = s + 3 - NS
            return pre + self.dma("w2", g, GREG[g]*32768, f"G{g}")

        nfm = self.o("nofill", 0)
        if nfm == 1: F.clear()
        PD = self.o("pd", 5)
        def rd(idx):
            acc, s, base, off, d2 = slots[idx]
            fr = aFR + 4*(idx % NFR)
            E(f"ds_read_b64_tr_b16 {ar(fr,2)}, v{base} offset:{off}", f"f{idx}")
            E(f"ds_read_b64_tr_b16 {ar(fr+2,2)}, v{base} offset:{off+d2}", f"f{idx}")
        E.vm_wait("st0")
        E("s_barrier")
        self.stamp("B0")
        for idx in range(PD): rd(idx)
        hi_q = list(stage_dma(3))
        st = {"obar_ready": False, "obar_done": False, "nextv": 0, "nexthi": 0}
        BIG = 10**6
        def drain(budget, idx, force_until=None):
            free = force_until is not None or idx >= BIG
            while True:
                if hi_q and not free and idx >= st["nextv"] and idx >= st["nexthi"]:
                    w, f, vc = hi_q.pop(0); f(E); budget -= w
                    st["nextv"] = idx + vc; st["nexthi"] = idx + (self.o("dmapace", 3) if len(hi_q) < 8 and idx < N - 16 else 2)
                    continue
                if lo_q and not hi_q and not free and idx >= max(st["nextv"], self.o("lostart", 40)) and budget > 0:
                    w, f, vc = lo_q.pop(0); f(E); budget -= w; st["nextv"] = idx + vc
                    assert idx < 7*32 - 2
                    continue
                if not F: return
                it = F[0]
                if not free and budget <= 0: return
                if it[0] == "g":
                    if idx >= it[1]: F.pop(0); continue
                    assert force_until is None, f"deadline {force_until} blocked by gate {it[1]}"
                    return
                if it[0] == "d":
                    F.pop(0)
                    if force_until is not None and it[1] == force_until: return
                    continue
                if it[0] == "lag":
                    F.pop(0)
                    if not free: F.insert(0, ("g", idx + it[1]))
                    continue
                if it[0] == "brk":
                    F.pop(0)
                    if not free: return
                    continue
                if it[0] == "obar":
                    st["obar_ready"] = True
                    return
                if not free:
                    if it[1] == 2 and budget == 1: return
                    if it[3] and idx < st["nextv"]: return
                F.pop(0); it[2](E); budget -= it[1]
                if it[3]: st["nextv"] = idx + it[3]
        for idx in range(N):
            s = idx >> 5
            if idx % 32 == 16:
                if any(it[0] == "d" and it[1] == idx for it in F):
                    drain(0, idx, force_until=idx)
                if hi_q: print(f"var{var}: {len(hi_q)} DMA left at mid {s}", file=sys.stderr)
                while any(getattr(it[1], "tag", None) == f"st{s+1}" for it in hi_q): hi_q.pop(0)[1](E)
                if s + 1 < NS: E.vm_wait(f"st{s+1}")
                E("s_barrier")
                self.E.comment(f"---- mid stage {s}")
                if st["obar_ready"] and not st["obar_done"]:
                    st["obar_done"] = True
                    F.pop(0)
                    X(o_items())
                hi_q.extend(mid_dma(s))
            acc, sx, base, off, d2 = slots[idx]
            fr = aFR + 4*(idx % NFR)
            if idx % 2 == 0: E.lg_wait(f"f{min(idx+1, N-1)}")
            else: E.lg_wait(f"f{idx}")
            E(f"v_mfma_f32_32x32x16_bf16 {vr(acc,16)}, {ar(fr,4)}, {ar(aXN+4*sx,4)}, {vr(acc,16) if sx else 0}")
            if idx + PD < N: rd(idx + PD)
            drain(self.quota[idx % len(self.quota)], idx)
            if idx % 32 == 31: self.stamp(f"s{idx>>5}")
        self.stamp("T")
        if self.o("stopT", 0):
            self.store_stamps(); E.vm_all(); E("s_endpgm"); return
        print(f"variant {var}: leftover fillers at end:", sum(it[1] for it in F if it[0] == "i"), "hi", len(hi_q), "obar_done", st["obar_done"], file=sys.stderr)
        while hi_q: hi_q.pop(0)[1](E)
        drain(BIG, BIG)
        if not st["obar_done"]:
            assert st["obar_ready"]
            F.pop(0)
            E("s_barrier")
            for it in o_items(): it[1](E)
        assert not F and not lo_q
        self.stamp("odone")
        self.poll_check(E, vWP+2, self.pA, "pA")
        if self.o("atouch", 1):
            E(f"v_lshlrev_b32 v{vT}, 3, v{vL16}\nv_and_b32 v{vT}, 0xfff, v{vT}")
            E(f"buffer_load_dword v{vT+1}, v{vT}, {srd(SWS)}, s{sTCH} offen sc1", "atch")
        ep = self.h_epilogue_items(ACCB, 4 if var == 8 else 2, sTB, "hB")
        valu = [it for it in ep if not it[2]]; stores = [it for it in ep if it[2]]
        valu += [(1, lambda E, l=l: E(l), 0) for l in self.p2_setup_lines()]
        NPRE = self.o("npre", 10)
        per = -(-len(valu) // NPRE)
        for u in range(NPRE):
            self.bload(u)
            for it in valu[:per]: it[1](E)
            valu = valu[per:]
        for it in stores: it[1](E)
        if var == 6:
            for k in range(2): E(f"buffer_load_dword v{vT+1}, off, {srd(SDBG)}, 0", "hB")
        E.lg_all()
        E.vm_wait("G1")
        E("s_barrier")
        self.stamp("E0")

    P2 = dict(DN=0, SS=32, vA=[236, 237, 238, 239, 240, 241], vXo=231, vPF=246, vPD=242)
    def breg(self, u):
        order = list(range(160, 224, 4)) + list(range(128, 160, 4))
        return order[u % 24]
    def bload(self, u):
        E = self.E
        typ, rel = STEPS[u]
        base = sH2 if typ == "h" else sO2
        E(f"s_add_u32 s{sD1}, s{base}, {rel*1024}")
        E(f"buffer_load_dwordx4 {vr(self.breg(u),4)}, v{vL16}, {srd(SWS)}, s{sD1} offen sc1", f"b{u}")
    def p2_setup_lines(self):
        vA = self.P2["vA"]; vPF = self.P2["vPF"]; vXo = self.P2["vXo"]
        t = 248
        return lines(f"""v_lshrrev_b32 v{t}, 4, v{vL16}
v_lshrrev_b32 v{t+1}, 5, v{t}
v_bfe_u32 v{t+2}, v{t}, 4, 1
v_bfe_u32 v{t+3}, v{t}, 2, 2
v_and_b32 v{t+4}, 3, v{t}
v_lshl_add_u32 v{t+5}, v{t+1}, 2, v{t+3}
v_lshlrev_b32 v{t+5}, 7, v{t+5}
v_lshl_add_u32 v{t+5}, v{t+2}, 5, v{t+5}
v_lshl_add_u32 v{t+5}, v{t+4}, 3, v{t+5}
v_lshrrev_b32 v{t+6}, 1, v{t+3}
v_lshl_add_u32 v{t+5}, v{t+6}, 6, v{t+5}
s_and_b32 s{sT0}, s{sLW}, 8192
v_add_u32 v{vA[0]}, s{sT0}, v{t+5}
v_xor_b32 v{vA[1]}, 64, v{vA[0]}
v_add_u32 v{vA[2]}, 65536, v{vA[0]}
v_add_u32 v{vA[3]}, 65536, v{vA[1]}
v_add_u32 v{vA[4]}, 131072, v{vA[0]}
v_add_u32 v{vA[5]}, 131072, v{vA[1]}
v_and_b32 v{t+6}, 7, v{t}
v_lshlrev_b32 v{vPF}, 3, v{t+6}
v_lshrrev_b32 v{t+6}, 1, v{t+4}
v_lshl_add_u32 v{t+6}, v{t+6}, 1, v{t+4}
v_add_u32 v{t+6}, 1, v{t+6}
v_lshlrev_b32 v{vPF+1}, 3, v{t+6}
v_and_b32 v{t+6}, 31, v{t}
v_lshlrev_b32 v{t+6}, 10, v{t+6}
v_lshl_add_u32 v{vXo}, v{t+1}, 4, v{t+6}""")

    def phase2(self):
        E = self.E
        P = self.P2
        DN, SS, vA, vXo, vPF, vPD = P["DN"], P["SS"], P["vA"], P["vXo"], P["vPF"], P["vPD"]
        pE = f"buffer_load_dwordx2 {vr(vPD+2,2)}, v{vPF+1}, {srd(SWS)}, s{sFB2} offen sc1"
        pL = f"buffer_load_dwordx2 {vr(vPD,2)}, v{vPF}, {srd(SWS)}, s{sFB2} offen sc1"
        def wa(u, rh, ch):
            g, ul = u >> 3, u & 7
            a = GREG[g]*32768 + rh*16384 + ul*1024
            return vA[2*(a >> 16) + ch], a & 0xffff
        RING = 0; NR = 8; PW = 3
        wreg = lambda u: RING + 8*(u % NR)
        def rdW(u):
            for ch in range(2):
                for rh in range(2):
                    b, off = wa(u, rh, ch)
                    E(f"ds_read_b64_tr_b16 {ar(wreg(u)+4*ch+2*rh,2)}, v{b} offset:{off}", f"w{u}")
        D = self.o("bd", 14)
        NPRE = self.o("npre", 10)
        nextb = NPRE; nextw = 0
        wq = []
        wstart = {0: 3, 8: 4, 13: 5, 21: 6, 29: 7, 37: 8}
        bars = {13: 2, 21: 3, 29: 4, 37: 5, 45: 6, 53: 7, 61: 8}
        wl = 16
        lim = 32
        uE = 32 - D; uL = 48 - D
        plag = self.o("plag", 6)
        flagged = False
        for u in range(72):
            self.stamp(f"u{u}")
            if u in bars:
                E.vm_wait(f"G{bars[u]}"); E("s_barrier"); wl = 8*(bars[u] + 1)
            if u in wstart:
                g = wstart[u]; wq += self.dma("w2", g, GREG[g]*32768, f"G{g}")
            if u == uE - plag: E(pE, "pE")
            if u == uL - plag: E(pL, "pL")
            if u == uE: self.poll_check(E, vPD+2, pE, "pE"); lim = 48
            if u == uL: self.poll_check(E, vPD, pL, "pL"); lim = 72
            while nextw < min(u + PW + 1, wl):
                rdW(nextw); nextw += 1
            k = 0
            while nextb < lim and nextb <= u + D and k < 2:
                self.bload(nextb); nextb += 1; k += 1
            nw = 2 if (8 <= u < 13 and len(wq) > 13 - u) else 1
            for _ in range(nw):
                if wq: wq.pop(0)[1](E)
            assert nextb > u and nextw > u, (u, nextb, nextw)
            E.vm_wait(f"b{u}")
            if not flagged and "hB" not in E.vmq:
                flagged = True
                self.flag_item("hB", sFBw, vT+4)[1](E)
                self.stamp("flagB")
            E.lg_wait(f"w{u}")
            typ, rel = STEPS[u]
            first = (u == FIRST[typ])
            for ch in range(2):
                Dr = (DN if typ == "h" else SS) + 16*ch
                E(f"v_mfma_f32_32x32x16_bf16 {vr(Dr,16)}, {ar(wreg(u)+4*ch,4)}, {vr(self.breg(u),4)}, {0 if first else vr(Dr,16)}")
        assert not wq and flagged
        self.stamp("loop")
        lk1 = self.newlabel("k1"); lj = self.newlabel("kj")
        TT = 96; RX = 64
        E(f"""v_add_u32 v{vA[0]}, s{sLW}, v{vL16}
s_xor_b32 s{sT0}, s{sLW}, 8192
v_add_u32 v{vA[1]}, s{sT0}, v{vL16}""")
        for g in range(8): E(f"v_accvgpr_read_b32 v{128+g}, a{aXT+g}")
        for g in range(4):
            for d_ in range(2):
                E(f"v_lshlrev_b32 v{144+4*g+2*d_}, 16, v{128+2*g+d_}")
                E(f"v_and_b32 v{144+4*g+2*d_+1}, 0xffff0000, v{128+2*g+d_}")
        E("s_barrier")
        E(f"s_and_b32 s{sT0}, s{sW}, 1\ns_cmp_lg_u32 s{sT0}, 0")
        E(f"s_cbranch_scc1 {lk1}")
        for q in range(4):
            E(f"ds_write_b128 v{vA[0]}, {vr(DN+16+4*q,4)} offset:{q*1024}")
            E(f"ds_write_b128 v{vA[0]}, {vr(SS+16+4*q,4)} offset:{4096+q*1024}")
        E(f"s_branch {lj}")
        E.label(lk1)
        for q in range(4):
            E(f"ds_write_b128 v{vA[0]}, {vr(DN+4*q,4)} offset:{q*1024}")
            E(f"ds_write_b128 v{vA[0]}, {vr(SS+4*q,4)} offset:{4096+q*1024}")
        E("s_nop 1")
        for r in range(0, 16, 2):
            E(f"v_pk_mov_b32 {vr(DN+r,2)}, {vr(DN+16+r,2)}, {vr(DN+16+r,2)} op_sel:[0,1]")
            E(f"v_pk_mov_b32 {vr(SS+r,2)}, {vr(SS+16+r,2)}, {vr(SS+16+r,2)} op_sel:[0,1]")
        E.label(lj)
        E("s_waitcnt lgkmcnt(0)"); E.lgq.clear()
        E("s_barrier")
        for q in range(4):
            E(f"ds_read_b128 {vr(RX+4*q,4)}, v{vA[1]} offset:{q*1024}", f"e{q}")
        for q in range(4):
            E(f"ds_read_b128 {vr(RX+16+4*q,4)}, v{vA[1]} offset:{4096+q*1024}", f"e{4+q}")
        E(f"s_mov_b32 s{sT0}, 0xbfb8aa3b\ns_mov_b32 s{sT1}, 0xbfb8aa3b")
        for q in range(4):
            E.lg_wait(f"e{q}")
            for r in range(4*q, 4*q+4, 2): E(f"v_pk_add_f32 {vr(DN+r,2)}, {vr(DN+r,2)}, {vr(RX+r,2)}")
            for r in range(4*q, 4*q+4, 2): E(f"v_pk_mul_f32 {vr(TT+r,2)}, {vr(DN+r,2)}, s[{sT0}:{sT1}]")
            for r in range(4*q, 4*q+4): E(f"v_exp_f32 v{TT+r}, v{TT+r}")
        for r in range(0, 16, 2): E(f"v_pk_add_f32 {vr(TT+r,2)}, {vr(TT+r,2)}, 1.0 op_sel_hi:[1,0]")
        for r in range(16): E(f"v_rcp_f32 v{TT+r}, v{TT+r}")
        E.lg_all()
        for r in range(0, 16, 2): E(f"v_pk_add_f32 {vr(SS+r,2)}, {vr(SS+r,2)}, {vr(RX+16+r,2)}")
        for r in range(0, 16, 2): E(f"v_pk_mul_f32 {vr(DN+r,2)}, {vr(DN+r,2)}, {vr(TT+r,2)}")
        for r in range(0, 16, 2): E(f"v_pk_fma_f32 {vr(DN+r,2)}, {vr(DN+r,2)}, {vr(SS+r,2)}, {vr(144+r,2)}")
        for r in range(8): E(f"v_cvt_pk_bf16_f32 v{RX+r}, v{DN+2*r}, v{DN+2*r+1}")
        for pr in range(2):
            E(f"v_permlane32_swap_b32 v{RX+4*pr}, v{RX+4*pr+2}")
            E(f"v_permlane32_swap_b32 v{RX+4*pr+1}, v{RX+4*pr+3}")
        for pr in range(2):
            E(f"buffer_store_dwordx4 {vr(RX+4*pr,4)}, v{vXo}, {srd(SOUT)}, s{sOUT} offen offset:{pr*32}", "out")
        self.stamp("fin")
        self.store_stamps()

    def store_stamps(self):
        E = self.E
        if self.stamps:
            E.vm_all()
            self.stamp("end")
            E.raw(f"    s_memrealtime s[{sTA}:{sTA+1}]\n    s_waitcnt lgkmcnt(0)\n    s_sub_u32 s{sTA}, s{sTA}, s{sEP}\n    s_mov_b32 s{sTA+1}, 0")
            E(f"""s_lshl_b32 s{sT0}, s2, 2
s_add_u32 s{sT0}, s{sT0}, s{sW}
s_mul_i32 s{sT0}, s{sT0}, 64
s_add_u32 s{sT0}, s{sT0}, {STAMP}
v_mov_b32 v2, 0""")
            for n, s in enumerate([sTA] + [sST + 2*k for k in range(NSTAMP)]):
                E(f"v_mov_b32 v0, s{s}\nv_mov_b32 v1, s{s+1}")
                E(f"buffer_store_dwordx2 v[0:1], v2, {srd(SWS)}, s{sT0} offen offset:{n*8}")
                E("s_nop 1")

    def build(self):
        E = self.E
        self.prologue()
        if self.dump != "xn":
            E(f"s_cmp_lg_u32 s{sROT}, 0")
            E("s_cbranch_scc1 L_var6")
            save = (list(E.vmq), set(E.vm_done), list(E.lgq), set(E.lg_done), list(E.hist), E.pos)
            self.phase1(8)
            tail8 = list(E.vmq)
            E("s_branch L_phase2")
            E.raw(".p2align 6\nL_var6:")
            E.vmq, E.vm_done, E.lgq, E.lg_done, E.hist, E.pos = list(save[0]), set(save[1]), list(save[2]), set(save[3]), list(save[4]), save[5]
            self.phase1(6)
            tail6 = list(E.vmq)
            E.raw("L_phase2:")
            if not self.o("stopT", 0):
                k8 = tail8.index("b0"); k6 = tail6.index("b0")
                assert tail8[k8:] == tail6[k6:], (tail8, tail6)
                E.vmq = ["G2"] + tail8[k8:]
                self.phase2()
        E.raw("L_end:\n    s_endpgm\nL_code_end:")
        E.raw(f"""
.section .rodata,"a"
.p2align 6
.amdhsa_kernel {NAME}_kernel
  .amdhsa_next_free_vgpr 512
  .amdhsa_next_free_sgpr 102
  .amdhsa_accum_offset 256
  .amdhsa_group_segment_fixed_size 0
  .amdhsa_kernarg_size 88
  .amdhsa_user_sgpr_count 2
  .amdhsa_user_sgpr_kernarg_segment_ptr 1
  .amdhsa_system_sgpr_workgroup_id_x 1
.end_amdhsa_kernel""")
        print("nops:", E.n_nops, E.count, file=sys.stderr)
        return E.text()

def make_steps():
    dA = [0, 8, 2, 6]; dB = [4, 12, 0, 10]
    A, early, late = [], [], []
    for jj in range(8):
        base = 14*(jj >> 1)
        A += [("h", base + dA[jj & 3] + t) for t in range(4)]
    for jj in (1, 2, 5, 6):
        base = 14*(jj >> 1)
        early += [("h", base + dB[jj & 3] + t) for t in range(2)]
    for jj in (1, 2, 5, 6):
        early += [("o", 2*jj + h) for h in range(2)]
    for jj in (0, 3, 4, 7):
        late += [("o", 2*jj + h) for h in range(2)]
    for jj in (0, 3, 4, 7):
        base = 14*(jj >> 1)
        late += [("h", base + dB[jj & 3] + t) for t in range(4)]
    s = A + early + late
    assert sorted(r for t, r in s if t == "h") == list(range(56)) and sorted(r for t, r in s if t == "o") == list(range(16))
    return s
STEPS = make_steps()
FIRST = {"h": 0, "o": min(u for u, (t, r) in enumerate(STEPS) if t == "o")}

if __name__ == "__main__":
    ap = argparse.ArgumentParser()
    ap.add_argument("-o", default="/dev/stdout")
    ap.add_argument("--stamps", default=None)
    ap.add_argument("--dump", default=None)
    ap.add_argument("--quota", default="4,3")
    ap.add_argument("--opt", default="")
    a = ap.parse_args()
    g = Gen(stamps=a.stamps.split(',') if a.stamps else None, dump=a.dump, quota=tuple(int(x) for x in a.quota.split(',')),
            opt={k: int(v) for k, v in (kv.split('=') for kv in a.opt.split(',') if kv)})
    open(a.o, "w").write(g.build())
```
